```python
import torch

def _softmax(x, axis=-1):
    return torch.softmax(x, dim=axis)
def _gelu(x):
    return torch.nn.functional.gelu(x, approximate="tanh")
def _silu(x):
    return torch.nn.functional.silu(x)
def _sigmoid(x):
    return torch.sigmoid(x)
def _layernorm(x, axis=-1, eps=1e-5):
    m = x.mean(dim=axis, keepdim=True)
    v = x.var(dim=axis, keepdim=True, unbiased=False)
    return (x - m) / torch.sqrt(v + eps)
def _scatter_add(tgt, idx, src, axis=0):
    return tgt.clone().index_add_(axis, idx, src)
def _segment_sum(src, seg, n):
    out = torch.zeros((n,) + src.shape[1:], dtype=src.dtype)
    return out.index_add_(0, seg, src)
def _pad(x, pw):
    flat = tuple(v for pair in reversed(pw) for v in pair)
    return torch.nn.functional.pad(x, flat)

kernel_name = 'recurrent_scan__mha_block__swiglu_ffn__prompt'

def setup_inputs():

    _w = (lambda a: (lambda t: t.to(torch.bfloat16) if t.is_floating_point() else t)(torch.as_tensor(a)))
    def _A_setup():
        B, S, D, H = 1, 2048, 1024, 32
        return {
            "x": _w((lambda *s: torch.randn(*s, dtype=torch.bfloat16) * 0.05)(B, S, D)),
            "wqkv": _w((lambda *s: torch.randn(*s, dtype=torch.bfloat16) * 0.05)(D, 3 * D)),
            "wo": _w((lambda *s: torch.randn(*s, dtype=torch.bfloat16) * 0.05)(D, D)),
        }
    _A_in = _A_setup()

    def _B_setup():
        B, S, D, F = 1, 2048, 1024, 3584
        return {
            "x": _w((lambda *s: torch.randn(*s, dtype=torch.bfloat16) * 0.05)(B, S, D)),
            "w_gate": _w((lambda *s: torch.randn(*s, dtype=torch.bfloat16) * 0.05)(D, F)),
            "w_up": _w((lambda *s: torch.randn(*s, dtype=torch.bfloat16) * 0.05)(D, F)),
            "w_down": _w((lambda *s: torch.randn(*s, dtype=torch.bfloat16) * 0.05)(F, D)),
        }
    _B_in = _B_setup()

    return {
        "A_x": _A_in["x"],
        "A_wqkv": _A_in["wqkv"],
        "A_wo": _A_in["wo"],
        "B_x": _B_in["x"],
        "B_w_gate": _B_in["w_gate"],
        "B_w_up": _B_in["w_up"],
        "B_w_down": _B_in["w_down"],
    }

def reference(A_x, A_wqkv, A_wo, B_x, B_w_gate, B_w_up, B_w_down):
    def _A_ref(x, wqkv, wo):
        B, S, D = x.shape
        H = 32
        Dh = D // H
        qkv = (lambda x, *d: x.permute(*d))((x @ wqkv).reshape(B, S, 3, H, Dh), 2, 0, 3, 1, 4)
        q, k, v = qkv[0], qkv[1], qkv[2]
        scores = torch.einsum("bhqd,bhkd->bhqk", q, k) * (Dh ** -0.5)
        p = _softmax(scores, axis=-1)
        o = torch.einsum("bhqk,bhkd->bhqd", p, v)
        return (lambda x, *d: x.permute(*d))(o, 0, 2, 1, 3).reshape(B, S, D) @ wo

    def _B_ref(x, w_gate, w_up, w_down):
        g = _silu(x @ w_gate)
        u = x @ w_up
        return (g * u) @ w_down

    x = A_x
    xn = _layernorm(x, axis=-1)
    s = _A_ref(xn, A_wqkv, A_wo)
    g = _silu(_B_ref(xn, B_w_gate, B_w_up, B_w_down))
    return x + s * g
```

```python
import struct


def f32(x):
    return "0x%08x" % struct.unpack("<I", struct.pack("<f", x))[0]


def vr(base, n=1):
    return f"v{base}" if n == 1 else f"v[{base}:{base + n - 1}]"


def sr(base, n=1):
    return f"s{base}" if n == 1 else f"s[{base}:{base + n - 1}]"


class Asm:
    def __init__(self):
        self.lines = []

    def __call__(self, text=""):
        for ln in text.split("\n"):
            ln = ln.strip()
            if not ln:
                continue
            if ln.endswith(":") or ln.startswith("."):
                self.lines.append(ln)
            else:
                self.lines.append("  " + ln)

    def ext(self, seq):
        for s in seq:
            self(s)

    def text(self):
        return "\n".join(self.lines) + "\n"


def mfma32(d, a, b, c=None):
    cs = vr(d, 16) if c is None else (c if isinstance(c, str) else vr(c, 16))
    return f"v_mfma_f32_32x32x16_bf16 {vr(d, 16)}, {vr(a, 4)}, {vr(b, 4)}, {cs}"


def mfma16(d, a, b, c=None):
    cs = vr(d, 4) if c is None else (c if isinstance(c, str) else vr(c, 4))
    return f"v_mfma_f32_16x16x32_bf16 {vr(d, 4)}, {vr(a, 4)}, {vr(b, 4)}, {cs}"


def weave(main, fill):
    out = []
    for i, m in enumerate(main):
        out.append(m)
        if i < len(fill):
            out.extend(fill[i])
    for extra in fill[len(main):]:
        out.extend(extra)
    return out


def srd(a, s, lo, hi, nbytes):
    a(f"s_mov_b32 s{s}, s{lo}")
    a(f"s_and_b32 s{s + 1}, s{hi}, 0xffff")
    a(f"s_mov_b32 s{s + 2}, {nbytes}")
    a(f"s_mov_b32 s{s + 3}, 0x20000")


def srd_off(a, s, lo, hi, off, nbytes):
    a(f"s_add_u32 s{s}, s{lo}, {off}")
    a(f"s_addc_u32 s{s + 1}, s{hi}, 0")
    a(f"s_and_b32 s{s + 1}, s{s + 1}, 0xffff")
    a(f"s_mov_b32 s{s + 2}, {nbytes}")
    a(f"s_mov_b32 s{s + 3}, 0x20000")


def kernel_begin(a, name):
    a(".text")
    a(f".globl {name}")
    a(".p2align 8")
    a(f".type {name},@function")
    a(f"{name}:")


def kernel_desc(name, vgprs, sgprs=96):
    acc = (vgprs + 3) // 4 * 4
    return f""".section .rodata,"a"
.p2align 6
.amdhsa_kernel {name}
  .amdhsa_next_free_vgpr {vgprs}
  .amdhsa_next_free_sgpr {sgprs}
  .amdhsa_accum_offset {acc}
  .amdhsa_group_segment_fixed_size 0
  .amdhsa_kernarg_size 80
  .amdhsa_user_sgpr_count 2
  .amdhsa_user_sgpr_kernarg_segment_ptr 1
  .amdhsa_system_sgpr_workgroup_id_x 1
.end_amdhsa_kernel
"""
```

```python
import math
import sys
from asmlib import *

MB = 1 << 20
WS_XN, WS_Q, WS_K, WS_V, WS_O, WS_H = 0, 4 * MB, 8 * MB, 12 * MB, 16 * MB, 20 * MB
H_BYTES = 2048 * 3584 * 2
LOG2E = 1.4426950408889634
QSCALE = 32 ** -0.5 * LOG2E


def allreduce_add(a, v, t):
    a("s_nop 1")
    a(f"v_add_f32_dpp v{v}, v{v}, v{v} quad_perm:[1,0,3,2] row_mask:0xf bank_mask:0xf")
    a("s_nop 1")
    a(f"v_add_f32_dpp v{v}, v{v}, v{v} quad_perm:[2,3,0,1] row_mask:0xf bank_mask:0xf")
    a("s_nop 1")
    a(f"v_add_f32_dpp v{v}, v{v}, v{v} row_half_mirror row_mask:0xf bank_mask:0xf")
    a("s_nop 1")
    a(f"v_add_f32_dpp v{v}, v{v}, v{v} row_mirror row_mask:0xf bank_mask:0xf")
    a(f"v_mov_b32 v{t}, v{v}")
    a("s_nop 1")
    a(f"v_permlane16_swap_b32 v{v}, v{t}")
    a("s_nop 1")
    a(f"v_add_f32 v{v}, v{v}, v{t}")
    a(f"v_mov_b32 v{t}, v{v}")
    a("s_nop 1")
    a(f"v_permlane32_swap_b32 v{v}, v{t}")
    a("s_nop 1")
    a(f"v_add_f32 v{v}, v{v}, v{t}")


def round_bf16(a, v):
    a(f"v_cvt_pk_bf16_f32 v{v}, v{v}, v{v}")
    a(f"v_lshlrev_b32 v{v}, 16, v{v}")


def gen_ln(a):
    name = "ln_kernel"
    kernel_begin(a, name)
    a(f"""
    s_cmp_ge_u32 s2, 256
    s_cbranch_scc1 L_ln_end
    s_load_dwordx2 s[4:5], s[0:1], 0
    s_load_dwordx2 s[6:7], s[0:1], 72
    v_lshrrev_b32 v1, 6, v0
    v_and_b32 v0, 63, v0
    v_readfirstlane_b32 s20, v1
    s_lshr_b32 s21, s2, 2
    s_and_b32 s22, s2, 3
    s_lshr_b32 s23, s22, 1
    s_lshl_b32 s23, s23, 4
    s_and_b32 s24, s22, 1
    s_lshl_b32 s24, s24, 2
    s_add_u32 s23, s23, s24
    s_lshr_b32 s24, s20, 2
    s_lshl_b32 s24, s24, 3
    s_add_u32 s23, s23, s24
    s_and_b32 s24, s20, 3
    s_add_u32 s23, s23, s24
    s_lshl_b32 s24, s21, 5
    s_add_u32 s23, s23, s24
    s_lshl_b32 s23, s23, 11
    v_lshlrev_b32 v1, 4, v0
    s_waitcnt lgkmcnt(0)
    """)
    srd(a, 8, 4, 5, 4 * MB)
    srd_off(a, 12, 6, 7, WS_XN, 4 * MB)
    a("buffer_load_dwordx4 v[2:5], v1, s[8:11], s23 offen")
    a("buffer_load_dwordx4 v[6:9], v1, s[8:11], s23 offen offset:1024")
    a("""
    v_and_b32 v30, 7, v0
    v_xor_b32 v30, s20, v30
    v_lshlrev_b32 v31, 3, v0
    v_add_u32 v30, v30, v31
    v_lshlrev_b32 v30, 4, v30
    v_lshrrev_b32 v31, 3, v0
    v_and_b32 v32, 7, v0
    v_xor_b32 v33, v31, v32
    v_lshl_add_u32 v33, v31, 3, v33
    v_lshlrev_b32 v33, 4, v33
    s_lshl_b32 s24, s20, 11
    v_add_u32 v33, s24, v33
    v_lshlrev_b32 v34, 9, v31
    v_lshl_add_u32 v34, v32, 4, v34
    s_lshl_b32 s25, s21, 16
    s_lshl_b32 s24, s20, 13
    s_add_u32 s25, s25, s24
    s_lshl_b32 s24, s22, 7
    s_add_u32 s25, s25, s24
    s_waitcnt vmcnt(0)
    """)
    for k in range(8):
        a(f"v_lshlrev_b32 v{10 + 2 * k}, 16, v{2 + k}")
        a(f"v_and_b32 v{11 + 2 * k}, 0xffff0000, v{2 + k}")
    a("v_add_f32 v26, v10, v11")
    a("v_add_f32 v27, v12, v13")
    for k in range(14, 26, 2):
        a(f"v_add_f32 v26, v26, v{k}")
        a(f"v_add_f32 v27, v27, v{k + 1}")
    a("v_add_f32 v26, v26, v27")
    allreduce_add(a, 26, 27)
    a(f"v_mul_f32 v26, {f32(1 / 1024)}, v26")
    for k in range(16):
        a(f"v_sub_f32 v{40 + k}, v{10 + k}, v26")
    a("v_mul_f32 v28, v40, v40")
    a("v_mul_f32 v29, v41, v41")
    for k in range(2, 16, 2):
        a(f"v_fmac_f32 v28, v{40 + k}, v{40 + k}")
        a(f"v_fmac_f32 v29, v{41 + k}, v{41 + k}")
    a("v_add_f32 v28, v28, v29")
    allreduce_add(a, 28, 29)
    a(f"v_mul_f32 v28, {f32(1 / 1024)}, v28")
    round_bf16(a, 26)
    round_bf16(a, 28)
    a(f"v_add_f32 v28, {f32(1e-5)}, v28")
    round_bf16(a, 28)
    a("v_sqrt_f32 v28, v28")
    a("s_nop 0")
    round_bf16(a, 28)
    a("v_rcp_f32 v28, v28")
    for k in range(16):
        a(f"v_sub_f32 v{10 + k}, v{10 + k}, v26")
    for k in range(8):
        a(f"v_cvt_pk_bf16_f32 v{2 + k}, v{10 + 2 * k}, v{11 + 2 * k}")
    for k in range(8):
        a(f"v_lshlrev_b32 v{10 + 2 * k}, 16, v{2 + k}")
        a(f"v_and_b32 v{11 + 2 * k}, 0xffff0000, v{2 + k}")
    for k in range(16):
        a(f"v_mul_f32 v{10 + k}, v{10 + k}, v28")
    for k in range(8):
        a(f"v_cvt_pk_bf16_f32 v{2 + k}, v{10 + 2 * k}, v{11 + 2 * k}")
    a("""
    ds_write_b128 v30, v[2:5]
    ds_write_b128 v30, v[6:9] offset:8192
    s_waitcnt lgkmcnt(0)
    s_barrier
    ds_read_b128 v[2:5], v33
    ds_read_b128 v[6:9], v33 offset:1024
    s_add_u32 s26, s25, 4096
    s_waitcnt lgkmcnt(1)
    buffer_store_dwordx4 v[2:5], v34, s[12:15], s25 offen
    s_waitcnt lgkmcnt(0)
    buffer_store_dwordx4 v[6:9], v34, s[12:15], s26 offen
    L_ln_end:
    s_endpgm
    """)
    return kernel_desc(name, 64)


G1_X, G1_G, G1_U, G1_Q, G1_STAGE = 0, 16384, 23680, 30848, 36992
G1_LDS = 4 * G1_STAGE


def tr_lane_parts(a, vlane, vk, vc, vg, t):
    a(f"v_lshrrev_b32 v{vk}, 5, v{vlane}")
    a(f"v_lshlrev_b32 v{vk}, 3, v{vk}")
    a(f"v_bfe_u32 v{t}, v{vlane}, 2, 2")
    a(f"v_add_u32 v{vk}, v{vk}, v{t}")
    a(f"v_and_b32 v{vc}, 1, v{vlane}")
    a(f"v_lshlrev_b32 v{vc}, 4, v{vc}")
    a(f"v_bfe_u32 v{t}, v{vlane}, 1, 1")
    a(f"v_lshl_add_u32 v{vc}, v{t}, 3, v{vc}")
    a(f"v_bfe_u32 v{vg}, v{vlane}, 4, 1")


def silu_mul_tile(a, g, u, tmp, pk):
    for k in range(8):
        a(f"v_mul_f32 v{tmp + k}, {f32(-LOG2E)}, v{g + k}")
    for k in range(8):
        a(f"v_exp_f32 v{tmp + k}, v{tmp + k}")
    for k in range(8):
        a(f"v_mul_f32 v{g + k}, v{g + k}, v{u + k}")
    for k in range(8):
        a(f"v_add_f32 v{tmp + k}, 1.0, v{tmp + k}")
    for k in range(8):
        a(f"v_rcp_f32 v{tmp + k}, v{tmp + k}")
    a("s_nop 0")
    for k in range(8):
        a(f"v_mul_f32 v{g + k}, v{g + k}, v{tmp + k}")
    for k in range(4):
        a(f"v_cvt_pk_bf16_f32 v{pk + k}, v{g + 2 * k}, v{g + 2 * k + 1}")


def gen_gemm1(a):
    name = "gemm1_kernel"
    ACC = 0
    FA, FB = 160, 188
    VXA, VWG, VWQ = 216, 217, 218
    VDX, VDA, VDB, VDC = 219, 220, 221, 222
    VL, T0, T1, T2, T3 = 223, 224, 225, 226, 227
    NV = 228
    kernel_begin(a, name)
    a(f"""
    s_cmp_ge_u32 s2, 256
    s_cbranch_scc1 L_g1_end
    s_load_dwordx2 s[4:5], s[0:1], 8
    s_load_dwordx4 s[44:47], s[0:1], 32
    s_load_dwordx2 s[6:7], s[0:1], 72
    v_lshrrev_b32 v1, 6, v0
    v_and_b32 v{VL}, 63, v0
    v_readfirstlane_b32 s24, v1
    s_lshr_b32 s27, s2, 3
    s_and_b32 s25, s27, 7
    s_lshr_b32 s27, s27, 3
    s_and_b32 s26, s2, 7
    s_lshl_b32 s26, s26, 2
    s_add_u32 s26, s26, s27
    s_waitcnt lgkmcnt(0)
    """)
    srd_off(a, 8, 6, 7, WS_XN, 4 * MB)
    srd(a, 20, 4, 5, 1024 * 6144)

    def gate_off(vd, sp):
        a(f"""
        s_lshl_b32 s28, {sp}, 6
        v_add_u32 v{T0}, s28, v{VL}
        v_mul_u32_u24 v{T1}, 4682, v{T0}
        v_lshrrev_b32 v{T1}, 16, v{T1}
        v_mul_u32_u24 v{T2}, 14, v{T1}
        v_sub_u32 v{T0}, v{T0}, v{T2}
        v_mul_u32_u24 v{T1}, 7168, v{T1}
        v_lshl_add_u32 v{vd}, v{T0}, 4, v{T1}
        s_mul_i32 s28, s26, 224
        v_add_u32 v{vd}, s28, v{vd}
        """)

    def qkv_off(vd, sp):
        a(f"""
        s_lshl_b32 s28, {sp}, 6
        v_add_u32 v{T0}, s28, v{VL}
        v_mul_u32_u24 v{T1}, 5462, v{T0}
        v_lshrrev_b32 v{T1}, 16, v{T1}
        v_mul_u32_u24 v{T2}, 12, v{T1}
        v_sub_u32 v{T0}, v{T0}, v{T2}
        v_mul_u32_u24 v{T1}, 6144, v{T1}
        v_lshrrev_b32 v{T2}, 2, v{T0}
        v_lshl_add_u32 v{T1}, v{T2}, 11, v{T1}
        v_and_b32 v{T0}, 3, v{T0}
        v_lshl_add_u32 v{vd}, v{T0}, 4, v{T1}
        s_lshl_b32 s28, s26, 6
        v_add_u32 v{vd}, s28, v{vd}
        """)

    a("s_cmp_eq_u32 s24, 7")
    a("s_cbranch_scc1 L_g1_w7")
    srd(a, 12, 44, 45, 1024 * 7168)
    srd(a, 16, 46, 47, 1024 * 7168)
    gate_off(VDA, "s24")
    a(f"v_mov_b32 v{VDB}, v{VDA}")
    a("s_and_b32 s29, s24, 3")
    qkv_off(VDC, "s29")
    a(f"""
    s_lshl_b32 s28, s24, 10
    s_add_u32 s37, s28, {G1_G}
    s_add_u32 s38, s28, {G1_U}
    s_lshl_b32 s28, s29, 10
    s_add_u32 s39, s28, {G1_Q}
    s_mov_b32 s34, {32 * 7168}
    s_branch L_g1_common
    L_g1_w7:
    """)
    srd(a, 12, 4, 5, 1024 * 6144)
    srd(a, 16, 4, 5, 1024 * 6144)
    qkv_off(VDA, "3")
    qkv_off(VDB, "4")
    qkv_off(VDC, "5")
    a(f"""
    s_mov_b32 s37, {G1_Q + 3072}
    s_mov_b32 s38, {G1_Q + 4096}
    s_mov_b32 s39, {G1_Q + 5120}
    s_mov_b32 s34, {32 * 6144}
    L_g1_common:
    s_lshl_b32 s28, s25, 3
    s_add_u32 s28, s28, s24
    s_lshl_b32 s28, s28, 16
    v_lshl_add_u32 v{VDX}, v{VL}, 4, s28
    s_lshl_b32 s36, s24, 11
    s_mov_b32 s30, 0
    s_mov_b32 s31, 0
    s_mov_b32 s33, 0
    s_mov_b32 s40, 0
    s_mov_b32 s42, 0
    s_mov_b32 s43, 0
    s_mov_b32 s35, {G1_STAGE}
    """)
    tr_lane_parts(a, VL, T0, T1, T2, T3)
    a(f"""
    v_mul_u32_u24 v{VWG}, 224, v{T0}
    v_add_u32 v{VWG}, v{VWG}, v{T1}
    v_mul_u32_u24 v{T3}, {G1_U - G1_G}, v{T2}
    v_add_u32 v{VWG}, v{VWG}, v{T3}
    v_add_u32 v{VWG}, {G1_G}, v{VWG}
    v_mul_u32_u24 v{VWQ}, 192, v{T0}
    v_add_u32 v{VWQ}, v{VWQ}, v{T1}
    v_lshl_add_u32 v{VWQ}, v{T2}, 5, v{VWQ}
    v_add_u32 v{VWQ}, {G1_Q}, v{VWQ}
    s_and_b32 s28, s24, 3
    s_lshl_b32 s28, s28, 12
    v_lshl_add_u32 v{VXA}, v{VL}, 4, s28
    s_cmp_ge_u32 s24, 4
    s_cbranch_scc1 L_g1_wn1
    """)

    def part1(wn):
        L = [["s_add_u32 m0, s36, s40", "s_nop 0", f"buffer_load_dwordx4 v{VDX}, s[8:11], s30 offen lds"],
             [f"buffer_load_dwordx4 v{VDX}, s[8:11], s30 offen offset:1024 lds", "s_add_u32 s30, s30, 2048"]]
        if wn:
            L.append(["s_add_u32 m0, s39, s40", "s_nop 0", f"buffer_load_dwordx4 v{VDC}, s[20:23], s33 offen lds",
                      f"s_add_u32 s33, s33, {32 * 6144}"])
        return L

    def part2(wn):
        return [["s_add_u32 m0, s37, s40", "s_nop 0", f"buffer_load_dwordx4 v{VDA}, s[12:15], s31 offen lds"],
                ["s_add_u32 m0, s38, s40", f"s_add_u32 s40, s40, {G1_STAGE}",
                 f"buffer_load_dwordx4 v{VDB}, s[16:19], s31 offen lds",
                 "s_add_u32 s31, s31, s34", f"s_cmp_eq_u32 s40, {G1_LDS}", "s_cselect_b32 s40, 0, s40"]]

    def reads(wn, F, s):
        R = []
        def wread(j):
            if wn == 0 and j < 3:
                v, o, q = VWQ, j * 64 + s * 3072, 768
            else:
                jj = j - 3 if wn == 0 else j + 2
                v, o, q = VWG, jj * 32 + s * 3584, 896
            return [f"ds_read_b64_tr_b16 {vr(F + 8 + 4 * j, 2)}, v{v} offset:{o}",
                    f"ds_read_b64_tr_b16 {vr(F + 10 + 4 * j, 2)}, v{v} offset:{o + q}"]
        R.append(f"ds_read_b128 {vr(F, 4)}, v{VXA} offset:{s * 1024}")
        R += wread(0)
        R.append(f"ds_read_b128 {vr(F + 4, 4)}, v{VXA} offset:{2048 + s * 1024}")
        for j in range(1, 5):
            R += wread(j)
        return R

    def mfmas(wn, F):
        M = []
        for j in range(5):
            for tm in range(2):
                d = ACC + (tm * 5 + j) * 16
                if wn == 0 and j == 2:
                    M.append(mfma32(d, F + 4 * tm, F + 8 + 4 * j))
                else:
                    M.append(mfma32(d, F + 8 + 4 * j, F + 4 * tm))
        return M

    for wn in (0, 1):
        P = 5 if wn else 4
        P1 = 3 if wn else 2
        if wn:
            a("L_g1_wn1:")
        for st in range(3):
            for grp in part1(wn) + part2(wn):
                a.ext(grp)
        for grp in part1(wn):
            a.ext(grp)
        for r in range(160):
            a(f"v_mov_b32 v{ACC + r}, 0")
        a(f"s_waitcnt vmcnt({2 * P + P1})")
        a("s_barrier")
        a.ext(reads(wn, FA, 0))
        a(".p2align 6")
        a(f"L_g1_loop{wn}:")
        a("s_waitcnt lgkmcnt(0)")
        R = reads(wn, FB, 1)
        D = part2(wn)
        fill = [R[0:2], R[2:4], R[4:6], R[6:8], R[8:10], R[10:12], D[0], [], D[1], []]
        a.ext(weave(mfmas(wn, FA), fill))
        a(f"""
        s_add_u32 s42, s42, {G1_STAGE}
        s_cmp_eq_u32 s42, {G1_LDS}
        s_cselect_b32 s41, {-3 * G1_STAGE & 0xffffffff}, s35
        s_cselect_b32 s42, 0, s42
        s_cmp_lt_u32 s43, 28
        s_cselect_b32 s10, s10, 0
        s_cselect_b32 s14, s14, 0
        s_cselect_b32 s18, s18, 0
        s_cselect_b32 s22, s22, 0
        v_add_u32 v{VXA}, s41, v{VXA}
        v_add_u32 v{VWG}, s41, v{VWG}
        """)
        if wn == 0:
            a(f"v_add_u32 v{VWQ}, s41, v{VWQ}")
        a(f"s_waitcnt vmcnt({2 * P}) lgkmcnt(0)")
        a("s_barrier")
        R = reads(wn, FA, 0)
        D = part1(wn)
        fill = [R[0:2], R[2:4], R[4:6], R[6:8], R[8:10], R[10:12], D[0], D[1], D[2] if wn else [],
                ["s_add_u32 s43, s43, 1", "s_cmp_lt_u32 s43, 32"]]
        a.ext(weave(mfmas(wn, FB), fill))
        a(f"s_cbranch_scc1 L_g1_loop{wn}")
        a("s_nop 15")
        a("s_waitcnt lgkmcnt(0)")
        a(f"""
        s_lshl_b32 s28, s25, 3
        s_and_b32 s29, s24, 3
        s_lshl_b32 s29, s29, 1
        s_add_u32 s28, s28, s29
        v_lshlrev_b32 v{T0}, 4, v{VL}
        s_mul_i32 s30, s28, {224 * 1024}
        s_mul_i32 s31, s26, 7168
        s_add_u32 s30, s30, s31
        s_add_u32 s31, s30, {224 * 1024}
        """)
        srd_off(a, 8, 6, 7, WS_H, H_BYTES)
        pk = [FA, FA + 4, FA + 8, FA + 12]
        npk = 0
        if wn == 0:
            srd_off(a, 12, 6, 7, WS_Q, 12 * MB)
            a(f"""
            s_lshl_b32 s32, s26, 17
            s_lshl_b32 s33, s28, 11
            s_add_u32 s32, s32, s33
            s_add_u32 s33, s32, {4 * MB}
            s_add_u32 s34, s32, {8 * MB}
            """)
            for j in (1, 2, 0):
                for tm in range(2):
                    b = ACC + (tm * 5 + j) * 16
                    if j == 0:
                        for k in range(16):
                            a(f"v_mul_f32 v{b + k}, {f32(QSCALE)}, v{b + k}")
                    for t in range(2):
                        p = pk[npk % 4]
                        npk += 1
                        for k in range(4):
                            a(f"v_cvt_pk_bf16_f32 v{p + k}, v{b + 8 * t + 2 * k}, v{b + 8 * t + 2 * k + 1}")
                        a(f"buffer_store_dwordx4 {vr(p, 4)}, v{T0}, s[12:15], s{32 + j} offen offset:{tm * 2048 + t * 1024}")
        for j in range(3 if wn == 0 else 0, 5):
            jj = j - 3 if wn == 0 else j + 2
            for tm in range(2):
                b = ACC + (tm * 5 + j) * 16
                p = pk[npk % 4]
                npk += 1
                silu_mul_tile(a, b, b + 8, FB, p)
                if jj < 4:
                    a(f"buffer_store_dwordx4 {vr(p, 4)}, v{T0}, s[8:11], s{30 + tm} offen offset:{jj * 1024}")
                else:
                    a(f"s_add_u32 s35, s{30 + tm}, 4096")
                    a(f"buffer_store_dwordx4 {vr(p, 4)}, v{T0}, s[8:11], s35 offen offset:{(jj - 4) * 1024}")
        a("s_endpgm")
    a("L_g1_end:")
    a("s_endpgm")
    return kernel_desc(name, NV)


AT_STAGE = 16384
AT_RING = 4
AT_FLAG = AT_RING * AT_STAGE
AT_LDS = AT_FLAG + 64


def gen_attn(a):
    name = "attn_kernel"
    Q, CI, S0, S1, P, O, L, ONE = 0, 8, 24, 40, 56, 64, 80, 84
    KF = [88, 96]
    VF = [104, 112]
    VA, VD, VL, T0, T1, MX = 120, 121, 122, 123, 124, 125
    NV = 128
    kernel_begin(a, name)
    a(f"""
    s_cmp_ge_u32 s2, 256
    s_cbranch_scc1 L_at_end
    s_load_dwordx2 s[6:7], s[0:1], 72
    v_lshrrev_b32 v1, 6, v0
    v_and_b32 v{VL}, 63, v0
    v_readfirstlane_b32 s24, v1
    s_lshr_b32 s27, s2, 3
    s_and_b32 s25, s27, 7
    s_lshr_b32 s27, s27, 3
    s_and_b32 s26, s2, 7
    s_lshl_b32 s26, s26, 2
    s_add_u32 s26, s26, s27
    s_waitcnt lgkmcnt(0)
    """)
    srd_off(a, 12, 6, 7, WS_Q, 4 * MB)
    srd_off(a, 16, 6, 7, WS_O, 4 * MB)
    a(f"""
    v_lshlrev_b32 v{VA}, 4, v{VL}
    s_lshl_b32 s28, s26, 17
    s_lshl_b32 s29, s25, 3
    s_add_u32 s29, s29, s24
    s_lshl_b32 s30, s29, 11
    s_add_u32 s30, s30, s28
    buffer_load_dwordx4 {vr(Q, 4)}, v{VA}, s[12:15], s30 offen
    buffer_load_dwordx4 {vr(Q + 4, 4)}, v{VA}, s[12:15], s30 offen offset:1024
    s_lshl_b32 s36, s24, 10
    s_add_u32 s28, s28, s36
    v_add_u32 v{VD}, s28, v{VA}
    s_add_u32 s37, s36, 8192
    v_lshrrev_b32 v{T0}, 2, v{VL}
    v_lshrrev_b32 v{T1}, 4, v{VL}
    v_xor_b32 v{T0}, v{T0}, v{T1}
    v_and_b32 v{T0}, 1, v{T0}
    v_cmp_eq_u32 vcc, 0, v{T0}
    v_mov_b32 v{T1}, 0x3f803f80
    s_nop 0
    v_cndmask_b32 v{ONE}, 0, v{T1}, vcc
    v_mov_b32 v{ONE + 1}, v{ONE}
    v_mov_b32 v{ONE + 2}, v{ONE}
    v_mov_b32 v{ONE + 3}, v{ONE}
    """)
    for k in range(16):
        a(f"v_mov_b32 v{CI + k}, 0")
    a("s_mov_b32 s44, 0")

    def dma():
        return [["s_add_u32 m0, s36, s40", "s_nop 0", f"buffer_load_dwordx4 v{VD}, s[8:11], s31 offen lds"],
                ["s_add_u32 m0, s37, s40", f"s_add_u32 s40, s40, {AT_STAGE}",
                 f"buffer_load_dwordx4 v{VD}, s[8:11], s32 offen lds",
                 "s_add_u32 s31, s31, 8192", "s_add_u32 s32, s32, 8192",
                 f"s_and_b32 s40, s40, {AT_RING * AT_STAGE - 1}"]]

    def kread(buf, tile):
        return [f"ds_read_b128 {vr(KF[buf], 4)}, v{VA} offset:{tile * 2048}",
                f"ds_read_b128 {vr(KF[buf] + 4, 4)}, v{VA} offset:{tile * 2048 + 1024}"]

    def vread(buf, tile, va):
        return [f"ds_read_b128 {vr(VF[buf], 4)}, v{va} offset:{8192 + tile * 2048}",
                f"ds_read_b128 {vr(VF[buf] + 4, 4)}, v{va} offset:{8192 + tile * 2048 + 1024}"]

    def start_stream():
        srd_off(a, 8, 6, 7, WS_K, 8 * MB)
        a(f"""
        s_mov_b32 s31, 0
        s_mov_b32 s32, {4 * MB}
        s_mov_b32 s40, 0
        s_mov_b32 s43, 0
        v_lshlrev_b32 v{VA}, 4, v{VL}
        """)
        for st in range(3):
            for g in dma():
                a.ext(g)

    def stage_sync():
        a(f"""
        s_cmp_lt_u32 s43, 13
        s_cselect_b32 s10, s10, 0
        v_mov_b32 v{T1}, v{VA}
        v_add_u32 v{VA}, {AT_STAGE}, v{VA}
        v_and_b32 v{VA}, {AT_RING * AT_STAGE - 1}, v{VA}
        s_waitcnt vmcnt(2)
        s_barrier
        """)

    a("L_at_pass:")
    start_stream()
    for k in range(16):
        a(f"v_mov_b32 v{O + k}, 0")
    for k in range(4):
        a(f"v_mov_b32 v{L + k}, 0")
    a("s_waitcnt vmcnt(4)")
    a("s_barrier")
    a.ext(kread(0, 0))
    a.ext(kread(1, 1))
    a.ext(vread(0, 0, VA))
    a("s_waitcnt lgkmcnt(4)")
    a(mfma32(S0, KF[0], Q, CI))
    a(mfma32(S0, KF[0] + 4, Q + 4))
    a("s_nop 7")
    a(".p2align 6")
    a("L_at_loop:")
    for t in range(4):
        Sc, Sn = (S0, S1) if t % 2 == 0 else (S1, S0)
        kb, vb = (t + 1) % 2, t % 2
        if t == 2:
            a("s_waitcnt lgkmcnt(0)")
            stage_sync()
        else:
            a("s_waitcnt lgkmcnt(0)")
        kr = kread(kb ^ 1, (t + 2) % 4)
        if t == 2:
            vrd = vread(vb ^ 1, 3, T1)
        else:
            vrd = vread(vb ^ 1, (t + 1) % 4, VA)
        ex = [f"v_exp_f32 v{Sc + k}, v{Sc + k}" for k in range(16)]
        cv = [f"v_cvt_pk_bf16_f32 v{P + k}, v{Sc + 2 * k}, v{Sc + 2 * k + 1}" for k in range(8)]
        D = dma() if t == 2 else [[], []]
        a(mfma32(Sn, KF[kb], Q, CI))
        a.ext(kr)
        a.ext(ex[0:4])
        a(mfma32(Sn, KF[kb] + 4, Q + 4))
        a.ext(vrd)
        a.ext(ex[4:8])
        a.ext(cv[0:4])
        a.ext(ex[8:10])
        a(mfma32(O, VF[vb], P))
        a.ext(D[0])
        a.ext(ex[10:14])
        a(mfma16(L, ONE, P))
        a.ext(ex[14:16])
        a(cv[4])
        a(cv[5])
        a(cv[6])
        a(cv[7])
        a.ext(D[1])
        if t == 3:
            a("s_add_u32 s43, s43, 1")
            a("s_cmp_lt_u32 s43, 16")
        else:
            a("s_nop 1")
        a(mfma32(O, VF[vb] + 4, P + 4))
        a(mfma16(L, ONE, P + 4))
    a("s_cbranch_scc1 L_at_loop")
    a("s_nop 15")
    a(f"""
    v_mov_b32 v{T0}, 0
    """)
    for k in range(16):
        a(f"v_and_b32 v{T1}, 0x7fffffff, v{O + k}")
        a(f"v_max_u32 v{T0}, v{T0}, v{T1}")
    a(f"""
    v_mov_b32 v{T1}, 0x7f800000
    v_cmp_ge_u32 s[46:47], v{T0}, v{T1}
    v_mov_b32 v{T1}, {f32(2.0 ** -64)}
    v_cmp_nge_f32 s[48:49], v{L}, v{T1}
    v_mov_b32 v{T1}, {f32(2.0 ** 64)}
    v_cmp_nle_f32 vcc, v{L}, v{T1}
    s_or_b64 s[46:47], s[46:47], s[48:49]
    s_or_b64 s[46:47], s[46:47], vcc
    s_cmp_lg_u64 s[46:47], 0
    s_cselect_b32 s45, 1, 0
    s_lshl_b32 s46, s24, 2
    s_add_u32 s46, s46, {AT_FLAG}
    v_mov_b32 v{T0}, s46
    v_mov_b32 v{T1}, s45
    ds_write_b32 v{T0}, v{T1}
    v_and_b32 v{T0}, 7, v{VL}
    v_lshlrev_b32 v{T0}, 2, v{T0}
    v_add_u32 v{T0}, {AT_FLAG}, v{T0}
    s_waitcnt vmcnt(0) lgkmcnt(0)
    s_barrier
    ds_read_b32 v{T1}, v{T0}
    s_waitcnt lgkmcnt(0)
    v_cmp_ne_u32 vcc, 0, v{T1}
    s_nop 4
    s_cmp_eq_u64 vcc, 0
    s_cbranch_scc1 L_at_store
    s_cmp_eq_u32 s44, 1
    s_cbranch_scc1 L_at_store
    """)
    a("s_mov_b32 s44, 1")
    a("s_barrier")
    start_stream()
    a(f"v_mov_b32 v{MX}, 0xff800000")
    a("s_waitcnt vmcnt(4)")
    a("s_barrier")
    a("L_at_maxloop:")
    for t in range(4):
        a.ext([f"ds_read_b128 {vr(KF[0], 4)}, v{VA} offset:{t * 2048}",
               f"ds_read_b128 {vr(KF[0] + 4, 4)}, v{VA} offset:{t * 2048 + 1024}"])
        a("s_waitcnt lgkmcnt(0)")
        a(mfma32(S0, KF[0], Q, "0"))
        a(mfma32(S0, KF[0] + 4, Q + 4))
        a("s_nop 15")
        for k in range(0, 16, 2):
            a(f"v_max3_f32 v{MX}, v{MX}, v{S0 + k}, v{S0 + k + 1}")
    stage_sync()
    for g in dma():
        a.ext(g)
    a(f"""
    s_add_u32 s43, s43, 1
    s_cmp_lt_u32 s43, 16
    s_cbranch_scc1 L_at_maxloop
    v_mov_b32 v{T0}, v{MX}
    s_nop 1
    v_permlane32_swap_b32 v{MX}, v{T0}
    s_nop 1
    v_max_f32 v{MX}, v{MX}, v{T0}
    """)
    for k in range(16):
        a(f"v_sub_f32 v{CI + k}, 0, v{MX}")
    a("s_waitcnt vmcnt(0)")
    a("s_barrier")
    a("s_branch L_at_pass")
    a("L_at_store:")
    a(f"v_rcp_f32 v{T0}, v{L}")
    a(f"""
    s_lshl_b32 s30, s29, 16
    s_lshl_b32 s31, s26, 11
    s_add_u32 s30, s30, s31
    v_lshlrev_b32 v{VA}, 4, v{VL}
    """)
    for k in range(16):
        a(f"v_mul_f32 v{O + k}, v{O + k}, v{T0}")
    for k in range(8):
        a(f"v_cvt_pk_bf16_f32 v{P + k}, v{O + 2 * k}, v{O + 2 * k + 1}")
    a(f"buffer_store_dwordx4 {vr(P, 4)}, v{VA}, s[16:19], s30 offen")
    a(f"buffer_store_dwordx4 {vr(P + 4, 4)}, v{VA}, s[16:19], s30 offen offset:1024")
    a("L_at_end:")
    a("s_endpgm")
    return kernel_desc(name, NV)


FN_STAGE = 24576
FN_RING = 6
FN_LDS = FN_RING * FN_STAGE


def gen_final(a):
    name = "final_kernel"
    AF, AS = 0, 32
    FA, FB = 64, 76
    VXA, VWA, VDX, VDW, VL, T0, T1, T2, T3 = 88, 89, 90, 91, 92, 93, 94, 95, 96
    XR = 100
    NV = 112
    kernel_begin(a, name)
    a(f"""
    s_cmp_ge_u32 s2, 256
    s_cbranch_scc1 L_fn_end
    s_load_dwordx2 s[4:5], s[0:1], 0
    s_load_dwordx2 s[44:45], s[0:1], 16
    s_load_dwordx4 s[48:51], s[0:1], 48
    s_load_dwordx2 s[6:7], s[0:1], 72
    v_lshrrev_b32 v1, 6, v0
    v_and_b32 v{VL}, 63, v0
    v_readfirstlane_b32 s24, v1
    s_and_b32 s27, s2, 7
    s_lshr_b32 s28, s2, 3
    s_and_b32 s25, s27, 3
    s_lshl_b32 s25, s25, 2
    s_and_b32 s29, s28, 3
    s_add_u32 s25, s25, s29
    s_lshr_b32 s26, s27, 2
    s_lshl_b32 s26, s26, 3
    s_lshr_b32 s29, s28, 2
    s_add_u32 s26, s26, s29
    s_waitcnt lgkmcnt(0)
    """)
    srd_off(a, 8, 6, 7, WS_H, H_BYTES)
    srd(a, 12, 48, 49, 3584 * 2048)
    a(f"""
    v_lshlrev_b32 v{VDX}, 4, v{VL}
    s_lshr_b32 s28, s24, 1
    s_lshl_b32 s29, s25, 2
    s_add_u32 s28, s28, s29
    s_and_b32 s29, s24, 1
    s_lshl_b32 s29, s29, 11
    s_mul_i32 s30, s28, {224 * 1024}
    s_add_u32 s30, s30, s29
    s_lshl_b32 s33, s28, 16
    s_add_u32 s33, s33, s29
    s_lshl_b32 s36, s24, 11
    s_lshl_b32 s37, s24, 10
    s_add_u32 s37, s37, 16384
    v_lshrrev_b32 v{T0}, 3, v{VL}
    v_bfe_u32 v{T1}, v{VL}, 4, 1
    v_lshlrev_b32 v{T1}, 2, v{T1}
    v_and_b32 v{T2}, 7, v{VL}
    v_xor_b32 v{T1}, v{T1}, v{T2}
    v_lshlrev_b32 v{T1}, 4, v{T1}
    v_lshl_add_u32 v{VDW}, v{T0}, 11, v{T1}
    s_lshl_b32 s28, s24, 14
    s_lshl_b32 s29, s26, 7
    s_add_u32 s28, s28, s29
    v_add_u32 v{VDW}, s28, v{VDW}
    s_mov_b32 s31, 0
    s_mov_b32 s40, 0
    s_mov_b32 s42, 0
    s_mov_b32 s43, 0
    s_mov_b32 s35, {FN_STAGE}
    """)
    tr_lane_parts(a, VL, T0, T1, T2, T3)
    a(f"""
    s_lshr_b32 s27, s24, 2
    s_and_b32 s28, s24, 1
    s_lshl_b32 s28, s28, 13
    s_lshl_b32 s29, s27, 11
    s_add_u32 s28, s28, s29
    v_lshl_add_u32 v{VXA}, v{VL}, 4, s28
    v_lshl_add_u32 v{T1}, v{T2}, 5, v{T1}
    s_bfe_u32 s28, s24, 0x10001
    v_bfe_u32 v{T2}, v{T0}, 1, 1
    v_xor_b32 v{T2}, s28, v{T2}
    v_lshl_add_u32 v{T1}, v{T2}, 6, v{T1}
    v_lshl_add_u32 v{VWA}, v{T0}, 7, v{T1}
    s_lshl_b32 s29, s27, 12
    s_add_u32 s29, s29, 16384
    v_add_u32 v{VWA}, s29, v{VWA}
    """)

    def dma():
        return [["s_add_u32 m0, s36, s40", "s_nop 0", f"buffer_load_dwordx4 v{VDX}, s[8:11], s30 offen lds"],
                [f"buffer_load_dwordx4 v{VDX}, s[8:11], s30 offen offset:1024 lds", "s_add_u32 s30, s30, 4096"],
                ["s_add_u32 m0, s37, s40", f"s_add_u32 s40, s40, {FN_STAGE}",
                 f"buffer_load_dwordx4 v{VDW}, s[12:15], s31 offen lds",
                 f"s_add_u32 s31, s31, {64 * 2048}", f"s_cmp_eq_u32 s40, {FN_LDS}", "s_cselect_b32 s40, 0, s40"]]

    def reads(F, s):
        return [f"ds_read_b128 {vr(F, 4)}, v{VXA} offset:{s * 1024}",
                f"ds_read_b64_tr_b16 {vr(F + 8, 2)}, v{VWA} offset:{s * 2048}",
                f"ds_read_b64_tr_b16 {vr(F + 10, 2)}, v{VWA} offset:{s * 2048 + 512}",
                f"ds_read_b128 {vr(F + 4, 4)}, v{VXA} offset:{4096 + s * 1024}"]

    for st in range(FN_RING):
        for g in dma():
            a.ext(g)
    for r in range(64):
        a(f"v_mov_b32 v{r}, 0")
    a(f"s_waitcnt vmcnt({3 * (FN_RING - 1)})")
    a("s_barrier")
    a.ext(reads(FA, 0))

    def loop(label, acc, last, switch_at, switch_code):
        a(".p2align 6")
        a(f"{label}:")
        a.ext(reads(FB, 1))
        a("s_waitcnt lgkmcnt(4)")
        a(mfma32(acc, FA + 8, FA))
        a(f"""
        s_add_u32 s42, s42, {FN_STAGE}
        s_cmp_eq_u32 s42, {FN_LDS}
        s_cselect_b32 s41, {-(FN_RING - 1) * FN_STAGE & 0xffffffff}, s35
        s_cselect_b32 s42, 0, s42
        """)
        a(mfma32(acc + 16, FA + 8, FA + 4))
        a(f"v_add_u32 v{VXA}, s41, v{VXA}")
        a(f"v_add_u32 v{VWA}, s41, v{VWA}")
        a(f"s_cmp_lg_u32 s43, {switch_at}")
        a(f"s_cbranch_scc1 {label}_ns")
        switch_code()
        a(f"{label}_ns:")
        a(f"s_waitcnt vmcnt({3 * (FN_RING - 2)}) lgkmcnt(0)")
        a("s_barrier")
        a.ext(reads(FA, 0))
        D = dma()
        a(mfma32(acc, FB + 8, FB))
        a.ext(D[0])
        a.ext(D[1])
        a(mfma32(acc + 16, FB + 8, FB + 4))
        a.ext(D[2])
        a("s_add_u32 s43, s43, 1")
        a(f"s_cmp_lt_u32 s43, {last}")
        a(f"s_cbranch_scc1 {label}")

    def to_wo():
        srd_off(a, 8, 6, 7, WS_O, 4 * MB)
        srd(a, 12, 44, 45, 1024 * 2048)
        a("s_mov_b32 s30, s33")
        a("s_mov_b32 s31, 0")

    def to_none():
        a("s_mov_b32 s10, 0")
        a("s_mov_b32 s14, 0")

    loop("L_fn_down", AF, 56, 56 - FN_RING, to_wo)
    loop("L_fn_wo", AS, 72, 72 - FN_RING, to_none)
    srd(a, 16, 4, 5, 4 * MB)
    srd(a, 20, 50, 51, 4 * MB)
    a(f"""
    v_and_b32 v{T0}, 0x13, v{VL}
    v_bfe_u32 v{T1}, v{VL}, 2, 1
    v_lshl_add_u32 v{T0}, v{T1}, 3, v{T0}
    v_bfe_u32 v{T1}, v{VL}, 3, 1
    v_lshl_add_u32 v{T0}, v{T1}, 2, v{T0}
    v_lshrrev_b32 v{T1}, 5, v{VL}
    v_lshlrev_b32 v{T1}, 4, v{T1}
    v_lshl_add_u32 v{T0}, v{T0}, 11, v{T1}
    s_lshl_b32 s28, s25, 2
    s_and_b32 s29, s24, 1
    s_lshl_b32 s29, s29, 1
    s_add_u32 s28, s28, s29
    s_add_u32 s28, s28, s27
    s_lshl_b32 s28, s28, 16
    s_lshl_b32 s29, s26, 7
    s_add_u32 s28, s28, s29
    s_bfe_u32 s29, s24, 0x10001
    s_lshl_b32 s29, s29, 6
    s_add_u32 s28, s28, s29
    s_waitcnt vmcnt(0) lgkmcnt(0)
    buffer_load_dwordx4 {vr(XR, 4)}, v{T0}, s[16:19], s28 offen
    buffer_load_dwordx4 {vr(XR + 4, 4)}, v{T0}, s[16:19], s28 offen offset:32
    s_barrier
    v_lshlrev_b32 v{T1}, 4, v{VL}
    s_lshl_b32 s29, s24, 13
    v_add_u32 v{T2}, s29, v{T1}
    s_xor_b32 s29, s29, {4 << 13}
    v_add_u32 v{T3}, s29, v{T1}
    s_cmp_eq_u32 s27, 0
    s_cbranch_scc1 L_fn_k0
    """)
    for kh in (1, 0):
        if kh == 0:
            a("L_fn_k0:")
        give, keep = 16 * (1 - kh), 16 * kh
        for q in range(4):
            a(f"ds_write_b128 v{T2}, {vr(AF + give + 4 * q, 4)} offset:{q * 1024}")
            a(f"ds_write_b128 v{T2}, {vr(AS + give + 4 * q, 4)} offset:{4096 + q * 1024}")
        a("s_waitcnt lgkmcnt(0)")
        a("s_barrier")
        for q in range(4):
            a(f"ds_read_b128 {vr(AF + give + 4 * q, 4)}, v{T3} offset:{q * 1024}")
        for q in range(4):
            a(f"ds_read_b128 {vr(AS + give + 4 * q, 4)}, v{T3} offset:{4096 + q * 1024}")
        a("s_waitcnt lgkmcnt(4)")
        f, s, tmp = AF + keep, AS + keep, FA
        for k in range(16):
            a(f"v_add_f32 v{f + k}, v{f + k}, v{AF + give + k}")
        for k in range(16):
            a(f"v_mul_f32 v{tmp + k}, {f32(-LOG2E)}, v{f + k}")
        for k in range(16):
            a(f"v_exp_f32 v{tmp + k}, v{tmp + k}")
        a("s_waitcnt lgkmcnt(0)")
        for k in range(16):
            a(f"v_add_f32 v{s + k}, v{s + k}, v{AS + give + k}")
        for k in range(16):
            a(f"v_add_f32 v{tmp + k}, 1.0, v{tmp + k}")
        for k in range(16):
            a(f"v_rcp_f32 v{tmp + k}, v{tmp + k}")
        for k in range(16):
            a(f"v_mul_f32 v{f + k}, v{f + k}, v{s + k}")
        a("s_waitcnt vmcnt(0)")
        xs = AS + give
        for k in range(8):
            a(f"v_lshlrev_b32 v{xs + 2 * k}, 16, v{XR + k}")
            a(f"v_and_b32 v{xs + 2 * k + 1}, 0xffff0000, v{XR + k}")
        for k in range(16):
            a(f"v_fmac_f32 v{xs + k}, v{f + k}, v{tmp + k}")
        for k in range(8):
            a(f"v_cvt_pk_bf16_f32 v{XR + k}, v{xs + 2 * k}, v{xs + 2 * k + 1}")
        a(f"buffer_store_dwordx4 {vr(XR, 4)}, v{T0}, s[20:23], s28 offen")
        a(f"buffer_store_dwordx4 {vr(XR + 4, 4)}, v{T0}, s[20:23], s28 offen offset:32")
        a("s_endpgm")
    a("L_fn_end:")
    a("s_endpgm")
    return kernel_desc(name, NV)


LAUNCHES = [("ln_kernel", 256, 512, 16384), ("gemm1_kernel", 256, 512, G1_LDS),
            ("attn_kernel", 256, 512, AT_LDS), ("final_kernel", 256, 512, FN_LDS)]


def build():
    head = open("recurrent_scan__mha_block__swiglu_ffn__prompt.s.ref").read().split("\n")
    hdr = [ln for ln in head[:11]]
    out = "\n".join(hdr) + "\n"
    for n, g, b, l in LAUNCHES:
        out += f"; @launch kernel={n} grid=({g},1,1) block=({b},1,1) lds={l}\n"
    out += '.amdgcn_target "amdgcn-amd-amdhsa--gfx950"\n'
    a = Asm()
    descs = [gen_ln(a), gen_gemm1(a), gen_attn(a), gen_final(a)]
    return out + a.text() + "".join(descs)


if __name__ == "__main__":
    path = sys.argv[1] if len(sys.argv) > 1 else "recurrent_scan__mha_block__swiglu_ffn__prompt.s"
    open(path, "w").write(build())
```

```python
import struct


def f32(x):
    return "0x%08x" % struct.unpack("<I", struct.pack("<f", x))[0]


def vr(base, n=1):
    return f"v{base}" if n == 1 else f"v[{base}:{base + n - 1}]"


def sr(base, n=1):
    return f"s{base}" if n == 1 else f"s[{base}:{base + n - 1}]"


class Asm:
    def __init__(self):
        self.lines = []

    def __call__(self, text=""):
        for ln in text.split("\n"):
            ln = ln.strip()
            if not ln:
                continue
            if ln.endswith(":") or ln.startswith("."):
                self.lines.append(ln)
            else:
                self.lines.append("  " + ln)

    def ext(self, seq):
        for s in seq:
            self(s)

    def text(self):
        return "\n".join(self.lines) + "\n"


def mfma32(d, a, b, c=None):
    cs = vr(d, 16) if c is None else (c if isinstance(c, str) else vr(c, 16))
    return f"v_mfma_f32_32x32x16_bf16 {vr(d, 16)}, {vr(a, 4)}, {vr(b, 4)}, {cs}"


def mfma16(d, a, b, c=None):
    cs = vr(d, 4) if c is None else (c if isinstance(c, str) else vr(c, 4))
    return f"v_mfma_f32_16x16x32_bf16 {vr(d, 4)}, {vr(a, 4)}, {vr(b, 4)}, {cs}"


def weave(main, fill):
    out = []
    for i, m in enumerate(main):
        out.append(m)
        if i < len(fill):
            out.extend(fill[i])
    for extra in fill[len(main):]:
        out.extend(extra)
    return out


def srd(a, s, lo, hi, nbytes):
    a(f"s_mov_b32 s{s}, s{lo}")
    a(f"s_and_b32 s{s + 1}, s{hi}, 0xffff")
    a(f"s_mov_b32 s{s + 2}, {nbytes}")
    a(f"s_mov_b32 s{s + 3}, 0x20000")


def srd_off(a, s, lo, hi, off, nbytes):
    a(f"s_add_u32 s{s}, s{lo}, {off}")
    a(f"s_addc_u32 s{s + 1}, s{hi}, 0")
    a(f"s_and_b32 s{s + 1}, s{s + 1}, 0xffff")
    a(f"s_mov_b32 s{s + 2}, {nbytes}")
    a(f"s_mov_b32 s{s + 3}, 0x20000")


def kernel_begin(a, name):
    a(".text")
    a(f".globl {name}")
    a(".p2align 8")
    a(f".type {name},@function")
    a(f"{name}:")


def kernel_desc(name, vgprs, sgprs=96):
    acc = (vgprs + 3) // 4 * 4
    return f""".section .rodata,"a"
.p2align 6
.amdhsa_kernel {name}
  .amdhsa_next_free_vgpr {vgprs}
  .amdhsa_next_free_sgpr {sgprs}
  .amdhsa_accum_offset {acc}
  .amdhsa_group_segment_fixed_size 0
  .amdhsa_kernarg_size 80
  .amdhsa_user_sgpr_count 2
  .amdhsa_user_sgpr_kernarg_segment_ptr 1
  .amdhsa_system_sgpr_workgroup_id_x 1
.end_amdhsa_kernel
"""


import os
DIAG = int(os.environ.get("DIAG", "0"))
STAMP_BASE = 64
WS_DIAG = 128 << 20


def stamp(a, i):
    if not DIAG:
        return
    a("s_memtime s[60:61]")
    a("s_memrealtime s[62:63]")
    a("s_waitcnt lgkmcnt(0)")
    a(f"s_mov_b32 s{STAMP_BASE + 2 * i}, s60")
    a(f"s_mov_b32 s{STAMP_BASE + 2 * i + 1}, s62")


def stamp_flush(a, kidx, n, swave, wslo, wshi, vt):
    if not DIAG:
        return
    a(f"s_lshl_b32 s60, s2, 3")
    a(f"s_add_u32 s60, s60, s{swave}")
    a(f"s_lshl_b32 s60, s60, 7")
    a(f"s_add_u32 s60, s60, {WS_DIAG + (kidx << 20)}")
    a(f"s_add_u32 s62, s{wslo}, s60")
    a(f"s_addc_u32 s63, s{wshi}, 0")
    a(f"v_mov_b32 v{vt}, 0")
    for i in range(2 * n):
        a(f"v_mov_b32 v{vt + 1}, s{STAMP_BASE + i}")
        a(f"global_store_dword v{vt}, v{vt + 1}, s[62:63] offset:{4 * i}")
        a("s_nop 1")
```

```python
import math
import sys
from asmlib import *

MB = 1 << 20
WS_XN, WS_Q, WS_K, WS_V, WS_O, WS_H = 0, 4 * MB, 8 * MB, 12 * MB, 16 * MB, 20 * MB
H_BYTES = 2048 * 3584 * 2
LOG2E = 1.4426950408889634
QSCALE = 32 ** -0.5 * LOG2E


def allreduce_add(a, v, t):
    a("s_nop 1")
    a(f"v_add_f32_dpp v{v}, v{v}, v{v} quad_perm:[1,0,3,2] row_mask:0xf bank_mask:0xf")
    a("s_nop 1")
    a(f"v_add_f32_dpp v{v}, v{v}, v{v} quad_perm:[2,3,0,1] row_mask:0xf bank_mask:0xf")
    a("s_nop 1")
    a(f"v_add_f32_dpp v{v}, v{v}, v{v} row_half_mirror row_mask:0xf bank_mask:0xf")
    a("s_nop 1")
    a(f"v_add_f32_dpp v{v}, v{v}, v{v} row_mirror row_mask:0xf bank_mask:0xf")
    a(f"v_mov_b32 v{t}, v{v}")
    a("s_nop 1")
    a(f"v_permlane16_swap_b32 v{v}, v{t}")
    a("s_nop 1")
    a(f"v_add_f32 v{v}, v{v}, v{t}")
    a(f"v_mov_b32 v{t}, v{v}")
    a("s_nop 1")
    a(f"v_permlane32_swap_b32 v{v}, v{t}")
    a("s_nop 1")
    a(f"v_add_f32 v{v}, v{v}, v{t}")


def round_bf16(a, v):
    a(f"v_cvt_pk_bf16_f32 v{v}, v{v}, v{v}")
    a(f"v_lshlrev_b32 v{v}, 16, v{v}")


def gen_ln(a):
    name = "ln_kernel"
    kernel_begin(a, name)
    a(f"""
    s_cmp_ge_u32 s2, 256
    s_cbranch_scc1 L_ln_end
    s_load_dwordx2 s[4:5], s[0:1], 0
    s_load_dwordx2 s[6:7], s[0:1], 72
    v_lshrrev_b32 v1, 6, v0
    v_and_b32 v0, 63, v0
    v_readfirstlane_b32 s20, v1
    s_lshr_b32 s21, s2, 2
    s_and_b32 s22, s2, 3
    s_lshr_b32 s23, s22, 1
    s_lshl_b32 s23, s23, 4
    s_and_b32 s24, s22, 1
    s_lshl_b32 s24, s24, 2
    s_add_u32 s23, s23, s24
    s_lshr_b32 s24, s20, 2
    s_lshl_b32 s24, s24, 3
    s_add_u32 s23, s23, s24
    s_and_b32 s24, s20, 3
    s_add_u32 s23, s23, s24
    s_lshl_b32 s24, s21, 5
    s_add_u32 s23, s23, s24
    s_lshl_b32 s23, s23, 11
    v_lshlrev_b32 v1, 4, v0
    s_waitcnt lgkmcnt(0)
    """)
    srd(a, 8, 4, 5, 4 * MB)
    srd_off(a, 12, 6, 7, WS_XN, 4 * MB)
    a("buffer_load_dwordx4 v[2:5], v1, s[8:11], s23 offen")
    a("buffer_load_dwordx4 v[6:9], v1, s[8:11], s23 offen offset:1024")
    a("""
    v_and_b32 v30, 7, v0
    v_xor_b32 v30, s20, v30
    v_lshlrev_b32 v31, 3, v0
    v_add_u32 v30, v30, v31
    v_lshlrev_b32 v30, 4, v30
    v_lshrrev_b32 v31, 3, v0
    v_and_b32 v32, 7, v0
    v_xor_b32 v33, v31, v32
    v_lshl_add_u32 v33, v31, 3, v33
    v_lshlrev_b32 v33, 4, v33
    s_lshl_b32 s24, s20, 11
    v_add_u32 v33, s24, v33
    v_lshlrev_b32 v34, 9, v31
    v_lshl_add_u32 v34, v32, 4, v34
    s_lshl_b32 s25, s21, 16
    s_lshl_b32 s24, s20, 13
    s_add_u32 s25, s25, s24
    s_lshl_b32 s24, s22, 7
    s_add_u32 s25, s25, s24
    s_waitcnt vmcnt(0)
    """)
    for k in range(8):
        a(f"v_lshlrev_b32 v{10 + 2 * k}, 16, v{2 + k}")
        a(f"v_and_b32 v{11 + 2 * k}, 0xffff0000, v{2 + k}")
    a("v_add_f32 v26, v10, v11")
    a("v_add_f32 v27, v12, v13")
    for k in range(14, 26, 2):
        a(f"v_add_f32 v26, v26, v{k}")
        a(f"v_add_f32 v27, v27, v{k + 1}")
    a("v_add_f32 v26, v26, v27")
    allreduce_add(a, 26, 27)
    a(f"v_mul_f32 v26, {f32(1 / 1024)}, v26")
    for k in range(16):
        a(f"v_sub_f32 v{40 + k}, v{10 + k}, v26")
    a("v_mul_f32 v28, v40, v40")
    a("v_mul_f32 v29, v41, v41")
    for k in range(2, 16, 2):
        a(f"v_fmac_f32 v28, v{40 + k}, v{40 + k}")
        a(f"v_fmac_f32 v29, v{41 + k}, v{41 + k}")
    a("v_add_f32 v28, v28, v29")
    allreduce_add(a, 28, 29)
    a(f"v_mul_f32 v28, {f32(1 / 1024)}, v28")
    round_bf16(a, 26)
    round_bf16(a, 28)
    a(f"v_add_f32 v28, {f32(1e-5)}, v28")
    round_bf16(a, 28)
    a("v_sqrt_f32 v28, v28")
    a("s_nop 0")
    round_bf16(a, 28)
    a("v_rcp_f32 v28, v28")
    for k in range(16):
        a(f"v_sub_f32 v{10 + k}, v{10 + k}, v26")
    for k in range(8):
        a(f"v_cvt_pk_bf16_f32 v{2 + k}, v{10 + 2 * k}, v{11 + 2 * k}")
    for k in range(8):
        a(f"v_lshlrev_b32 v{10 + 2 * k}, 16, v{2 + k}")
        a(f"v_and_b32 v{11 + 2 * k}, 0xffff0000, v{2 + k}")
    for k in range(16):
        a(f"v_mul_f32 v{10 + k}, v{10 + k}, v28")
    for k in range(8):
        a(f"v_cvt_pk_bf16_f32 v{2 + k}, v{10 + 2 * k}, v{11 + 2 * k}")
    a("""
    ds_write_b128 v30, v[2:5]
    ds_write_b128 v30, v[6:9] offset:8192
    s_waitcnt lgkmcnt(0)
    s_barrier
    ds_read_b128 v[2:5], v33
    ds_read_b128 v[6:9], v33 offset:1024
    s_add_u32 s26, s25, 4096
    s_waitcnt lgkmcnt(1)
    buffer_store_dwordx4 v[2:5], v34, s[12:15], s25 offen
    s_waitcnt lgkmcnt(0)
    buffer_store_dwordx4 v[6:9], v34, s[12:15], s26 offen
    L_ln_end:
    s_endpgm
    """)
    return kernel_desc(name, 64)


G1_X, G1_G, G1_U, G1_Q, G1_STAGE = 0, 16384, 23680, 30848, 36992
G1_LDS = 4 * G1_STAGE


def tr_lane_parts(a, vlane, vk, vc, vg, t):
    a(f"v_lshrrev_b32 v{vk}, 5, v{vlane}")
    a(f"v_lshlrev_b32 v{vk}, 3, v{vk}")
    a(f"v_bfe_u32 v{t}, v{vlane}, 2, 2")
    a(f"v_add_u32 v{vk}, v{vk}, v{t}")
    a(f"v_and_b32 v{vc}, 1, v{vlane}")
    a(f"v_lshlrev_b32 v{vc}, 4, v{vc}")
    a(f"v_bfe_u32 v{t}, v{vlane}, 1, 1")
    a(f"v_lshl_add_u32 v{vc}, v{t}, 3, v{vc}")
    a(f"v_bfe_u32 v{vg}, v{vlane}, 4, 1")


def silu_mul_tile(a, g, u, tmp, pk):
    for k in range(8):
        a(f"v_mul_f32 v{tmp + k}, {f32(-LOG2E)}, v{g + k}")
    for k in range(8):
        a(f"v_exp_f32 v{tmp + k}, v{tmp + k}")
    for k in range(8):
        a(f"v_mul_f32 v{g + k}, v{g + k}, v{u + k}")
    for k in range(8):
        a(f"v_add_f32 v{tmp + k}, 1.0, v{tmp + k}")
    for k in range(8):
        a(f"v_rcp_f32 v{tmp + k}, v{tmp + k}")
    a("s_nop 0")
    for k in range(8):
        a(f"v_mul_f32 v{g + k}, v{g + k}, v{tmp + k}")
    for k in range(4):
        a(f"v_cvt_pk_bf16_f32 v{pk + k}, v{g + 2 * k}, v{g + 2 * k + 1}")


def gen_gemm1(a):
    name = "gemm1_kernel"
    ACC = 0
    FA, FB = 160, 188
    VXA, VWG, VWQ = 216, 217, 218
    VDX, VDA, VDB, VDC = 219, 220, 221, 222
    VL, T0, T1, T2, T3 = 223, 224, 225, 226, 227
    NV = 228
    kernel_begin(a, name)
    a(f"""
    s_cmp_ge_u32 s2, 256
    s_cbranch_scc1 L_g1_end
    s_load_dwordx2 s[4:5], s[0:1], 8
    s_load_dwordx4 s[44:47], s[0:1], 32
    s_load_dwordx2 s[6:7], s[0:1], 72
    v_lshrrev_b32 v1, 6, v0
    v_and_b32 v{VL}, 63, v0
    v_readfirstlane_b32 s24, v1
    s_lshr_b32 s27, s2, 3
    s_and_b32 s25, s27, 7
    s_lshr_b32 s27, s27, 3
    s_and_b32 s26, s2, 7
    s_lshl_b32 s26, s26, 2
    s_add_u32 s26, s26, s27
    s_waitcnt lgkmcnt(0)
    """)
    stamp(a, 0)
    srd_off(a, 8, 6, 7, WS_XN, 4 * MB)
    srd(a, 20, 4, 5, 1024 * 6144)

    def gate_off(vd, sp):
        a(f"""
        s_lshl_b32 s28, {sp}, 6
        v_add_u32 v{T0}, s28, v{VL}
        v_mul_u32_u24 v{T1}, 4682, v{T0}
        v_lshrrev_b32 v{T1}, 16, v{T1}
        v_mul_u32_u24 v{T2}, 14, v{T1}
        v_sub_u32 v{T0}, v{T0}, v{T2}
        v_mul_u32_u24 v{T1}, 7168, v{T1}
        v_lshl_add_u32 v{vd}, v{T0}, 4, v{T1}
        s_mul_i32 s28, s26, 224
        v_add_u32 v{vd}, s28, v{vd}
        """)

    def qkv_off(vd, sp):
        a(f"""
        s_lshl_b32 s28, {sp}, 6
        v_add_u32 v{T0}, s28, v{VL}
        v_mul_u32_u24 v{T1}, 5462, v{T0}
        v_lshrrev_b32 v{T1}, 16, v{T1}
        v_mul_u32_u24 v{T2}, 12, v{T1}
        v_sub_u32 v{T0}, v{T0}, v{T2}
        v_mul_u32_u24 v{T1}, 6144, v{T1}
        v_lshrrev_b32 v{T2}, 2, v{T0}
        v_lshl_add_u32 v{T1}, v{T2}, 11, v{T1}
        v_and_b32 v{T0}, 3, v{T0}
        v_lshl_add_u32 v{vd}, v{T0}, 4, v{T1}
        s_lshl_b32 s28, s26, 6
        v_add_u32 v{vd}, s28, v{vd}
        """)

    a("s_cmp_eq_u32 s24, 7")
    a("s_cbranch_scc1 L_g1_w7")
    srd(a, 12, 44, 45, 1024 * 7168)
    srd(a, 16, 46, 47, 1024 * 7168)
    gate_off(VDA, "s24")
    a(f"v_mov_b32 v{VDB}, v{VDA}")
    a("s_and_b32 s29, s24, 3")
    qkv_off(VDC, "s29")
    a(f"""
    s_lshl_b32 s28, s24, 10
    s_add_u32 s37, s28, {G1_G}
    s_add_u32 s38, s28, {G1_U}
    s_lshl_b32 s28, s29, 10
    s_add_u32 s39, s28, {G1_Q}
    s_mov_b32 s34, {32 * 7168}
    s_branch L_g1_common
    L_g1_w7:
    """)
    srd(a, 12, 4, 5, 1024 * 6144)
    srd(a, 16, 4, 5, 1024 * 6144)
    qkv_off(VDA, "3")
    qkv_off(VDB, "4")
    qkv_off(VDC, "5")
    a(f"""
    s_mov_b32 s37, {G1_Q + 3072}
    s_mov_b32 s38, {G1_Q + 4096}
    s_mov_b32 s39, {G1_Q + 5120}
    s_mov_b32 s34, {32 * 6144}
    L_g1_common:
    s_lshl_b32 s28, s25, 3
    s_add_u32 s28, s28, s24
    s_lshl_b32 s28, s28, 16
    v_lshl_add_u32 v{VDX}, v{VL}, 4, s28
    s_lshl_b32 s36, s24, 11
    s_mov_b32 s30, 0
    s_mov_b32 s31, 0
    s_mov_b32 s33, 0
    s_mov_b32 s40, 0
    s_mov_b32 s42, 0
    s_mov_b32 s43, 0
    s_mov_b32 s35, {G1_STAGE}
    """)
    tr_lane_parts(a, VL, T0, T1, T2, T3)
    a(f"""
    v_mul_u32_u24 v{VWG}, 224, v{T0}
    v_add_u32 v{VWG}, v{VWG}, v{T1}
    v_mul_u32_u24 v{T3}, {G1_U - G1_G}, v{T2}
    v_add_u32 v{VWG}, v{VWG}, v{T3}
    v_add_u32 v{VWG}, {G1_G}, v{VWG}
    v_mul_u32_u24 v{VWQ}, 192, v{T0}
    v_add_u32 v{VWQ}, v{VWQ}, v{T1}
    v_lshl_add_u32 v{VWQ}, v{T2}, 5, v{VWQ}
    v_add_u32 v{VWQ}, {G1_Q}, v{VWQ}
    s_and_b32 s28, s24, 3
    s_lshl_b32 s28, s28, 12
    v_lshl_add_u32 v{VXA}, v{VL}, 4, s28
    s_cmp_ge_u32 s24, 4
    s_cbranch_scc1 L_g1_wn1
    """)

    def part1(wn):
        L = [["s_add_u32 m0, s36, s40", "s_nop 0", f"buffer_load_dwordx4 v{VDX}, s[8:11], s30 offen lds"],
             [f"buffer_load_dwordx4 v{VDX}, s[8:11], s30 offen offset:1024 lds", "s_add_u32 s30, s30, 2048"]]
        if wn:
            L.append(["s_add_u32 m0, s39, s40", "s_nop 0", f"buffer_load_dwordx4 v{VDC}, s[20:23], s33 offen lds",
                      f"s_add_u32 s33, s33, {32 * 6144}"])
        return L

    def part2(wn):
        return [["s_add_u32 m0, s37, s40", "s_nop 0", f"buffer_load_dwordx4 v{VDA}, s[12:15], s31 offen lds"],
                ["s_add_u32 m0, s38, s40", f"s_add_u32 s40, s40, {G1_STAGE}",
                 f"buffer_load_dwordx4 v{VDB}, s[16:19], s31 offen lds",
                 "s_add_u32 s31, s31, s34", f"s_cmp_eq_u32 s40, {G1_LDS}", "s_cselect_b32 s40, 0, s40"]]

    def reads(wn, F, s):
        R = []
        def wread(j):
            if wn == 0 and j < 3:
                v, o, q = VWQ, j * 64 + s * 3072, 768
            else:
                jj = j - 3 if wn == 0 else j + 2
                v, o, q = VWG, jj * 32 + s * 3584, 896
            return [f"ds_read_b64_tr_b16 {vr(F + 8 + 4 * j, 2)}, v{v} offset:{o}",
                    f"ds_read_b64_tr_b16 {vr(F + 10 + 4 * j, 2)}, v{v} offset:{o + q}"]
        R.append(f"ds_read_b128 {vr(F, 4)}, v{VXA} offset:{s * 1024}")
        R += wread(0)
        R.append(f"ds_read_b128 {vr(F + 4, 4)}, v{VXA} offset:{2048 + s * 1024}")
        for j in range(1, 5):
            R += wread(j)
        return R

    def mfmas(wn, F):
        M = []
        for j in range(5):
            for tm in range(2):
                d = ACC + (tm * 5 + j) * 16
                if wn == 0 and j == 2:
                    M.append(mfma32(d, F + 4 * tm, F + 8 + 4 * j))
                else:
                    M.append(mfma32(d, F + 8 + 4 * j, F + 4 * tm))
        return M

    for wn in (0, 1):
        P = 5 if wn else 4
        P1 = 3 if wn else 2
        if wn:
            a("L_g1_wn1:")
        for st in range(3):
            for grp in part1(wn) + part2(wn):
                a.ext(grp)
        for grp in part1(wn):
            a.ext(grp)
        for r in range(160):
            a(f"v_mov_b32 v{ACC + r}, 0")
        a(f"s_waitcnt vmcnt({2 * P + P1})")
        a("s_barrier")
        stamp(a, 1)
        a.ext(reads(wn, FA, 0))
        a(".p2align 6")
        a(f"L_g1_loop{wn}:")
        a("s_waitcnt lgkmcnt(0)")
        R = reads(wn, FB, 1)
        D = part2(wn)
        fill = [R[0:2], R[2:4], R[4:6], R[6:8], R[8:10], R[10:12], D[0], [], D[1], []]
        a.ext(weave(mfmas(wn, FA), fill))
        a(f"""
        s_add_u32 s42, s42, {G1_STAGE}
        s_cmp_eq_u32 s42, {G1_LDS}
        s_cselect_b32 s41, {-3 * G1_STAGE & 0xffffffff}, s35
        s_cselect_b32 s42, 0, s42
        s_cmp_lt_u32 s43, 28
        s_cselect_b32 s10, s10, 0
        s_cselect_b32 s14, s14, 0
        s_cselect_b32 s18, s18, 0
        s_cselect_b32 s22, s22, 0
        v_add_u32 v{VXA}, s41, v{VXA}
        v_add_u32 v{VWG}, s41, v{VWG}
        """)
        if wn == 0:
            a(f"v_add_u32 v{VWQ}, s41, v{VWQ}")
        a(f"s_waitcnt vmcnt({2 * P}) lgkmcnt(0)")
        a("s_barrier")
        R = reads(wn, FA, 0)
        D = part1(wn)
        fill = [R[0:2], R[2:4], R[4:6], R[6:8], R[8:10], R[10:12], D[0], D[1], D[2] if wn else [],
                ["s_add_u32 s43, s43, 1", "s_cmp_lt_u32 s43, 32"]]
        a.ext(weave(mfmas(wn, FB), fill))
        a(f"s_cbranch_scc1 L_g1_loop{wn}")
        a("s_nop 15")
        a("s_waitcnt lgkmcnt(0)")
        stamp(a, 2)
        a(f"""
        s_lshl_b32 s28, s25, 3
        s_and_b32 s29, s24, 3
        s_lshl_b32 s29, s29, 1
        s_add_u32 s28, s28, s29
        v_lshlrev_b32 v{T0}, 4, v{VL}
        s_mul_i32 s30, s28, {224 * 1024}
        s_mul_i32 s31, s26, 7168
        s_add_u32 s30, s30, s31
        s_add_u32 s31, s30, {224 * 1024}
        """)
        srd_off(a, 8, 6, 7, WS_H, H_BYTES)
        pk = [FA, FA + 4, FA + 8, FA + 12]
        npk = 0
        if wn == 0:
            srd_off(a, 12, 6, 7, WS_Q, 12 * MB)
            a(f"""
            s_lshl_b32 s32, s26, 17
            s_lshl_b32 s33, s28, 11
            s_add_u32 s32, s32, s33
            s_add_u32 s33, s32, {4 * MB}
            s_add_u32 s34, s32, {8 * MB}
            """)
            for j in (1, 2, 0):
                for tm in range(2):
                    b = ACC + (tm * 5 + j) * 16
                    if j == 0:
                        for k in range(16):
                            a(f"v_mul_f32 v{b + k}, {f32(QSCALE)}, v{b + k}")
                    for t in range(2):
                        p = pk[npk % 4]
                        npk += 1
                        for k in range(4):
                            a(f"v_cvt_pk_bf16_f32 v{p + k}, v{b + 8 * t + 2 * k}, v{b + 8 * t + 2 * k + 1}")
                        a(f"buffer_store_dwordx4 {vr(p, 4)}, v{T0}, s[12:15], s{32 + j} offen offset:{tm * 2048 + t * 1024}")
        for j in range(3 if wn == 0 else 0, 5):
            jj = j - 3 if wn == 0 else j + 2
            for tm in range(2):
                b = ACC + (tm * 5 + j) * 16
                p = pk[npk % 4]
                npk += 1
                silu_mul_tile(a, b, b + 8, FB, p)
                if jj < 4:
                    a(f"buffer_store_dwordx4 {vr(p, 4)}, v{T0}, s[8:11], s{30 + tm} offen offset:{jj * 1024}")
                else:
                    a(f"s_add_u32 s35, s{30 + tm}, 4096")
                    a(f"buffer_store_dwordx4 {vr(p, 4)}, v{T0}, s[8:11], s35 offen offset:{(jj - 4) * 1024}")
        stamp(a, 3)
        if DIAG:
            a("s_waitcnt vmcnt(0)")
        stamp(a, 4)
        stamp_flush(a, 1, 5, 24, 6, 7, T1)
        a("s_endpgm")
    a("L_g1_end:")
    a("s_endpgm")
    return kernel_desc(name, NV)


AT_STAGE = 16384
AT_RING = 4
AT_FLAG = AT_RING * AT_STAGE
AT_LDS = AT_FLAG + 64


def gen_attn(a):
    name = "attn_kernel"
    Q, CI, S0, S1, P, O, L, ONE = 0, 8, 24, 40, 56, 64, 80, 84
    KF = [88, 96]
    VF = [104, 112]
    VA, VD, VL, T0, T1, MX = 120, 121, 122, 123, 124, 125
    NV = 128
    kernel_begin(a, name)
    a(f"""
    s_cmp_ge_u32 s2, 256
    s_cbranch_scc1 L_at_end
    s_load_dwordx2 s[6:7], s[0:1], 72
    v_lshrrev_b32 v1, 6, v0
    v_and_b32 v{VL}, 63, v0
    v_readfirstlane_b32 s24, v1
    s_lshr_b32 s27, s2, 3
    s_and_b32 s25, s27, 7
    s_lshr_b32 s27, s27, 3
    s_and_b32 s26, s2, 7
    s_lshl_b32 s26, s26, 2
    s_add_u32 s26, s26, s27
    s_waitcnt lgkmcnt(0)
    """)
    stamp(a, 0)
    srd_off(a, 12, 6, 7, WS_Q, 4 * MB)
    srd_off(a, 16, 6, 7, WS_O, 4 * MB)
    a(f"""
    v_lshlrev_b32 v{VA}, 4, v{VL}
    s_lshl_b32 s28, s26, 17
    s_lshl_b32 s29, s25, 3
    s_add_u32 s29, s29, s24
    s_lshl_b32 s30, s29, 11
    s_add_u32 s30, s30, s28
    buffer_load_dwordx4 {vr(Q, 4)}, v{VA}, s[12:15], s30 offen
    buffer_load_dwordx4 {vr(Q + 4, 4)}, v{VA}, s[12:15], s30 offen offset:1024
    s_lshl_b32 s36, s24, 10
    s_add_u32 s28, s28, s36
    v_add_u32 v{VD}, s28, v{VA}
    s_add_u32 s37, s36, 8192
    v_lshrrev_b32 v{T0}, 2, v{VL}
    v_lshrrev_b32 v{T1}, 4, v{VL}
    v_xor_b32 v{T0}, v{T0}, v{T1}
    v_and_b32 v{T0}, 1, v{T0}
    v_cmp_eq_u32 vcc, 0, v{T0}
    v_mov_b32 v{T1}, 0x3f803f80
    s_nop 0
    v_cndmask_b32 v{ONE}, 0, v{T1}, vcc
    v_mov_b32 v{ONE + 1}, v{ONE}
    v_mov_b32 v{ONE + 2}, v{ONE}
    v_mov_b32 v{ONE + 3}, v{ONE}
    """)
    for k in range(16):
        a(f"v_mov_b32 v{CI + k}, 0")
    a("s_mov_b32 s44, 0")

    def dma():
        return [["s_add_u32 m0, s36, s40", "s_nop 0", f"buffer_load_dwordx4 v{VD}, s[8:11], s31 offen lds"],
                ["s_add_u32 m0, s37, s40", f"s_add_u32 s40, s40, {AT_STAGE}",
                 f"buffer_load_dwordx4 v{VD}, s[8:11], s32 offen lds",
                 "s_add_u32 s31, s31, 8192", "s_add_u32 s32, s32, 8192",
                 f"s_and_b32 s40, s40, {AT_RING * AT_STAGE - 1}"]]

    def kread(buf, tile):
        return [f"ds_read_b128 {vr(KF[buf], 4)}, v{VA} offset:{tile * 2048}",
                f"ds_read_b128 {vr(KF[buf] + 4, 4)}, v{VA} offset:{tile * 2048 + 1024}"]

    def vread(buf, tile, va):
        return [f"ds_read_b128 {vr(VF[buf], 4)}, v{va} offset:{8192 + tile * 2048}",
                f"ds_read_b128 {vr(VF[buf] + 4, 4)}, v{va} offset:{8192 + tile * 2048 + 1024}"]

    def start_stream():
        srd_off(a, 8, 6, 7, WS_K, 8 * MB)
        a(f"""
        s_mov_b32 s31, 0
        s_mov_b32 s32, {4 * MB}
        s_mov_b32 s40, 0
        s_mov_b32 s43, 0
        v_lshlrev_b32 v{VA}, 4, v{VL}
        """)
        for st in range(3):
            for g in dma():
                a.ext(g)

    def stage_sync():
        a(f"""
        s_cmp_lt_u32 s43, 13
        s_cselect_b32 s10, s10, 0
        v_mov_b32 v{T1}, v{VA}
        v_add_u32 v{VA}, {AT_STAGE}, v{VA}
        v_and_b32 v{VA}, {AT_RING * AT_STAGE - 1}, v{VA}
        s_waitcnt vmcnt(2)
        s_barrier
        """)

    a("L_at_pass:")
    start_stream()
    for k in range(16):
        a(f"v_mov_b32 v{O + k}, 0")
    for k in range(4):
        a(f"v_mov_b32 v{L + k}, 0")
    a("s_waitcnt vmcnt(4)")
    a("s_barrier")
    stamp(a, 1)
    a.ext(kread(0, 0))
    a.ext(kread(1, 1))
    a.ext(vread(0, 0, VA))
    a("s_waitcnt lgkmcnt(4)")
    a(mfma32(S0, KF[0], Q, CI))
    a(mfma32(S0, KF[0] + 4, Q + 4))
    a("s_nop 7")
    a(".p2align 6")
    a("L_at_loop:")
    for t in range(4):
        Sc, Sn = (S0, S1) if t % 2 == 0 else (S1, S0)
        kb, vb = (t + 1) % 2, t % 2
        if t == 2:
            a("s_waitcnt lgkmcnt(0)")
            stage_sync()
        else:
            a("s_waitcnt lgkmcnt(0)")
        kr = kread(kb ^ 1, (t + 2) % 4)
        if t == 2:
            vrd = vread(vb ^ 1, 3, T1)
        else:
            vrd = vread(vb ^ 1, (t + 1) % 4, VA)
        ex = [f"v_exp_f32 v{Sc + k}, v{Sc + k}" for k in range(16)]
        cv = [f"v_cvt_pk_bf16_f32 v{P + k}, v{Sc + 2 * k}, v{Sc + 2 * k + 1}" for k in range(8)]
        D = dma() if t == 2 else [[], []]
        a(mfma32(Sn, KF[kb], Q, CI))
        a.ext(kr)
        a.ext(ex[0:4])
        a(mfma32(Sn, KF[kb] + 4, Q + 4))
        a.ext(vrd)
        a.ext(ex[4:8])
        a.ext(cv[0:4])
        a.ext(ex[8:10])
        a(mfma32(O, VF[vb], P))
        a.ext(D[0])
        a.ext(ex[10:14])
        a(mfma16(L, ONE, P))
        a.ext(ex[14:16])
        a(cv[4])
        a(cv[5])
        a(cv[6])
        a(cv[7])
        a.ext(D[1])
        if t == 3:
            a("s_add_u32 s43, s43, 1")
            a("s_cmp_lt_u32 s43, 16")
        else:
            a("s_nop 1")
        a(mfma32(O, VF[vb] + 4, P + 4))
        a(mfma16(L, ONE, P + 4))
    a("s_cbranch_scc1 L_at_loop")
    a("s_nop 15")
    stamp(a, 2)
    a(f"""
    v_mov_b32 v{T0}, 0
    """)
    for k in range(16):
        a(f"v_and_b32 v{T1}, 0x7fffffff, v{O + k}")
        a(f"v_max_u32 v{T0}, v{T0}, v{T1}")
    a(f"""
    v_mov_b32 v{T1}, 0x7f800000
    v_cmp_ge_u32 s[46:47], v{T0}, v{T1}
    v_mov_b32 v{T1}, {f32(2.0 ** -64)}
    v_cmp_nge_f32 s[48:49], v{L}, v{T1}
    v_mov_b32 v{T1}, {f32(2.0 ** 64)}
    v_cmp_nle_f32 vcc, v{L}, v{T1}
    s_or_b64 s[46:47], s[46:47], s[48:49]
    s_or_b64 s[46:47], s[46:47], vcc
    s_cmp_lg_u64 s[46:47], 0
    s_cselect_b32 s45, 1, 0
    s_lshl_b32 s46, s24, 2
    s_add_u32 s46, s46, {AT_FLAG}
    v_mov_b32 v{T0}, s46
    v_mov_b32 v{T1}, s45
    ds_write_b32 v{T0}, v{T1}
    v_and_b32 v{T0}, 7, v{VL}
    v_lshlrev_b32 v{T0}, 2, v{T0}
    v_add_u32 v{T0}, {AT_FLAG}, v{T0}
    s_waitcnt vmcnt(0) lgkmcnt(0)
    s_barrier
    ds_read_b32 v{T1}, v{T0}
    s_waitcnt lgkmcnt(0)
    v_cmp_ne_u32 vcc, 0, v{T1}
    s_nop 4
    s_cmp_eq_u64 vcc, 0
    s_cbranch_scc1 L_at_store
    s_cmp_eq_u32 s44, 1
    s_cbranch_scc1 L_at_store
    """)
    a("s_mov_b32 s44, 1")
    a("s_barrier")
    start_stream()
    a(f"v_mov_b32 v{MX}, 0xff800000")
    a("s_waitcnt vmcnt(4)")
    a("s_barrier")
    a("L_at_maxloop:")
    for t in range(4):
        a.ext([f"ds_read_b128 {vr(KF[0], 4)}, v{VA} offset:{t * 2048}",
               f"ds_read_b128 {vr(KF[0] + 4, 4)}, v{VA} offset:{t * 2048 + 1024}"])
        a("s_waitcnt lgkmcnt(0)")
        a(mfma32(S0, KF[0], Q, "0"))
        a(mfma32(S0, KF[0] + 4, Q + 4))
        a("s_nop 15")
        for k in range(0, 16, 2):
            a(f"v_max3_f32 v{MX}, v{MX}, v{S0 + k}, v{S0 + k + 1}")
    stage_sync()
    for g in dma():
        a.ext(g)
    a(f"""
    s_add_u32 s43, s43, 1
    s_cmp_lt_u32 s43, 16
    s_cbranch_scc1 L_at_maxloop
    v_mov_b32 v{T0}, v{MX}
    s_nop 1
    v_permlane32_swap_b32 v{MX}, v{T0}
    s_nop 1
    v_max_f32 v{MX}, v{MX}, v{T0}
    """)
    for k in range(16):
        a(f"v_sub_f32 v{CI + k}, 0, v{MX}")
    a("s_waitcnt vmcnt(0)")
    a("s_barrier")
    a("s_branch L_at_pass")
    a("L_at_store:")
    a(f"v_rcp_f32 v{T0}, v{L}")
    a(f"""
    s_lshl_b32 s30, s29, 16
    s_lshl_b32 s31, s26, 11
    s_add_u32 s30, s30, s31
    v_lshlrev_b32 v{VA}, 4, v{VL}
    """)
    for k in range(16):
        a(f"v_mul_f32 v{O + k}, v{O + k}, v{T0}")
    for k in range(8):
        a(f"v_cvt_pk_bf16_f32 v{P + k}, v{O + 2 * k}, v{O + 2 * k + 1}")
    a(f"buffer_store_dwordx4 {vr(P, 4)}, v{VA}, s[16:19], s30 offen")
    a(f"buffer_store_dwordx4 {vr(P + 4, 4)}, v{VA}, s[16:19], s30 offen offset:1024")
    stamp(a, 3)
    if DIAG:
        a("s_waitcnt vmcnt(0)")
    stamp(a, 4)
    stamp_flush(a, 2, 5, 24, 6, 7, T0)
    a("L_at_end:")
    a("s_endpgm")
    return kernel_desc(name, NV)


FN_STAGE = 24576
FN_RING = 6
FN_LDS = FN_RING * FN_STAGE


def gen_final(a):
    name = "final_kernel"
    AF, AS = 0, 32
    FA, FB = 64, 76
    VXA, VWA, VDX, VDW, VL, T0, T1, T2, T3 = 88, 89, 90, 91, 92, 93, 94, 95, 96
    XR = 100
    NV = 112
    kernel_begin(a, name)
    a(f"""
    s_cmp_ge_u32 s2, 256
    s_cbranch_scc1 L_fn_end
    s_load_dwordx2 s[4:5], s[0:1], 0
    s_load_dwordx2 s[44:45], s[0:1], 16
    s_load_dwordx4 s[48:51], s[0:1], 48
    s_load_dwordx2 s[6:7], s[0:1], 72
    v_lshrrev_b32 v1, 6, v0
    v_and_b32 v{VL}, 63, v0
    v_readfirstlane_b32 s24, v1
    s_and_b32 s27, s2, 7
    s_lshr_b32 s28, s2, 3
    s_and_b32 s25, s27, 3
    s_lshl_b32 s25, s25, 2
    s_and_b32 s29, s28, 3
    s_add_u32 s25, s25, s29
    s_lshr_b32 s26, s27, 2
    s_lshl_b32 s26, s26, 3
    s_lshr_b32 s29, s28, 2
    s_add_u32 s26, s26, s29
    s_waitcnt lgkmcnt(0)
    """)
    stamp(a, 0)
    srd_off(a, 8, 6, 7, WS_H, H_BYTES)
    srd(a, 12, 48, 49, 3584 * 2048)
    a(f"""
    v_lshlrev_b32 v{VDX}, 4, v{VL}
    s_lshr_b32 s28, s24, 1
    s_lshl_b32 s29, s25, 2
    s_add_u32 s28, s28, s29
    s_and_b32 s29, s24, 1
    s_lshl_b32 s29, s29, 11
    s_mul_i32 s30, s28, {224 * 1024}
    s_add_u32 s30, s30, s29
    s_lshl_b32 s33, s28, 16
    s_add_u32 s33, s33, s29
    s_lshl_b32 s36, s24, 11
    s_lshl_b32 s37, s24, 10
    s_add_u32 s37, s37, 16384
    v_lshrrev_b32 v{T0}, 3, v{VL}
    v_bfe_u32 v{T1}, v{VL}, 4, 1
    v_lshlrev_b32 v{T1}, 2, v{T1}
    v_and_b32 v{T2}, 7, v{VL}
    v_xor_b32 v{T1}, v{T1}, v{T2}
    v_lshlrev_b32 v{T1}, 4, v{T1}
    v_lshl_add_u32 v{VDW}, v{T0}, 11, v{T1}
    s_lshl_b32 s28, s24, 14
    s_lshl_b32 s29, s26, 7
    s_add_u32 s28, s28, s29
    v_add_u32 v{VDW}, s28, v{VDW}
    s_mov_b32 s31, 0
    s_mov_b32 s40, 0
    s_mov_b32 s42, 0
    s_mov_b32 s43, 0
    s_mov_b32 s35, {FN_STAGE}
    """)
    tr_lane_parts(a, VL, T0, T1, T2, T3)
    a(f"""
    s_lshr_b32 s27, s24, 2
    s_and_b32 s28, s24, 1
    s_lshl_b32 s28, s28, 13
    s_lshl_b32 s29, s27, 11
    s_add_u32 s28, s28, s29
    v_lshl_add_u32 v{VXA}, v{VL}, 4, s28
    v_lshl_add_u32 v{T1}, v{T2}, 5, v{T1}
    s_bfe_u32 s28, s24, 0x10001
    v_bfe_u32 v{T2}, v{T0}, 1, 1
    v_xor_b32 v{T2}, s28, v{T2}
    v_lshl_add_u32 v{T1}, v{T2}, 6, v{T1}
    v_lshl_add_u32 v{VWA}, v{T0}, 7, v{T1}
    s_lshl_b32 s29, s27, 12
    s_add_u32 s29, s29, 16384
    v_add_u32 v{VWA}, s29, v{VWA}
    """)

    def dma():
        return [["s_add_u32 m0, s36, s40", "s_nop 0", f"buffer_load_dwordx4 v{VDX}, s[8:11], s30 offen lds"],
                [f"buffer_load_dwordx4 v{VDX}, s[8:11], s30 offen offset:1024 lds", "s_add_u32 s30, s30, 4096"],
                ["s_add_u32 m0, s37, s40", f"s_add_u32 s40, s40, {FN_STAGE}",
                 f"buffer_load_dwordx4 v{VDW}, s[12:15], s31 offen lds",
                 f"s_add_u32 s31, s31, {64 * 2048}", f"s_cmp_eq_u32 s40, {FN_LDS}", "s_cselect_b32 s40, 0, s40"]]

    def reads(F, s):
        return [f"ds_read_b128 {vr(F, 4)}, v{VXA} offset:{s * 1024}",
                f"ds_read_b64_tr_b16 {vr(F + 8, 2)}, v{VWA} offset:{s * 2048}",
                f"ds_read_b64_tr_b16 {vr(F + 10, 2)}, v{VWA} offset:{s * 2048 + 512}",
                f"ds_read_b128 {vr(F + 4, 4)}, v{VXA} offset:{4096 + s * 1024}"]

    for st in range(FN_RING):
        for g in dma():
            a.ext(g)
    for r in range(64):
        a(f"v_mov_b32 v{r}, 0")
    a(f"s_waitcnt vmcnt({3 * (FN_RING - 1)})")
    a("s_barrier")
    stamp(a, 1)
    a.ext(reads(FA, 0))

    def loop(label, acc, last, switch_at, switch_code):
        a(".p2align 6")
        a(f"{label}:")
        a.ext(reads(FB, 1))
        a("s_waitcnt lgkmcnt(4)")
        a(mfma32(acc, FA + 8, FA))
        a(f"""
        s_add_u32 s42, s42, {FN_STAGE}
        s_cmp_eq_u32 s42, {FN_LDS}
        s_cselect_b32 s41, {-(FN_RING - 1) * FN_STAGE & 0xffffffff}, s35
        s_cselect_b32 s42, 0, s42
        """)
        a(mfma32(acc + 16, FA + 8, FA + 4))
        a(f"v_add_u32 v{VXA}, s41, v{VXA}")
        a(f"v_add_u32 v{VWA}, s41, v{VWA}")
        a(f"s_cmp_lg_u32 s43, {switch_at}")
        a(f"s_cbranch_scc1 {label}_ns")
        switch_code()
        a(f"{label}_ns:")
        a(f"s_waitcnt vmcnt({3 * (FN_RING - 2)}) lgkmcnt(0)")
        a("s_barrier")
        a.ext(reads(FA, 0))
        D = dma()
        a(mfma32(acc, FB + 8, FB))
        a.ext(D[0])
        a.ext(D[1])
        a(mfma32(acc + 16, FB + 8, FB + 4))
        a.ext(D[2])
        a("s_add_u32 s43, s43, 1")
        a(f"s_cmp_lt_u32 s43, {last}")
        a(f"s_cbranch_scc1 {label}")

    def to_wo():
        srd_off(a, 8, 6, 7, WS_O, 4 * MB)
        srd(a, 12, 44, 45, 1024 * 2048)
        a("s_mov_b32 s30, s33")
        a("s_mov_b32 s31, 0")

    def to_none():
        a("s_mov_b32 s10, 0")
        a("s_mov_b32 s14, 0")

    loop("L_fn_down", AF, 56, 56 - FN_RING, to_wo)
    loop("L_fn_wo", AS, 72, 72 - FN_RING, to_none)
    stamp(a, 2)
    srd(a, 16, 4, 5, 4 * MB)
    srd(a, 20, 50, 51, 4 * MB)
    a(f"""
    v_and_b32 v{T0}, 0x13, v{VL}
    v_bfe_u32 v{T1}, v{VL}, 2, 1
    v_lshl_add_u32 v{T0}, v{T1}, 3, v{T0}
    v_bfe_u32 v{T1}, v{VL}, 3, 1
    v_lshl_add_u32 v{T0}, v{T1}, 2, v{T0}
    v_lshrrev_b32 v{T1}, 5, v{VL}
    v_lshlrev_b32 v{T1}, 4, v{T1}
    v_lshl_add_u32 v{T0}, v{T0}, 11, v{T1}
    s_lshl_b32 s28, s25, 2
    s_and_b32 s29, s24, 1
    s_lshl_b32 s29, s29, 1
    s_add_u32 s28, s28, s29
    s_add_u32 s28, s28, s27
    s_lshl_b32 s28, s28, 16
    s_lshl_b32 s29, s26, 7
    s_add_u32 s28, s28, s29
    s_bfe_u32 s29, s24, 0x10001
    s_lshl_b32 s29, s29, 6
    s_add_u32 s28, s28, s29
    s_waitcnt vmcnt(0) lgkmcnt(0)
    buffer_load_dwordx4 {vr(XR, 4)}, v{T0}, s[16:19], s28 offen
    buffer_load_dwordx4 {vr(XR + 4, 4)}, v{T0}, s[16:19], s28 offen offset:32
    s_barrier
    v_lshlrev_b32 v{T1}, 4, v{VL}
    s_lshl_b32 s29, s24, 13
    v_add_u32 v{T2}, s29, v{T1}
    s_xor_b32 s29, s29, {4 << 13}
    v_add_u32 v{T3}, s29, v{T1}
    s_cmp_eq_u32 s27, 0
    s_cbranch_scc1 L_fn_k0
    """)
    for kh in (1, 0):
        if kh == 0:
            a("L_fn_k0:")
        give, keep = 16 * (1 - kh), 16 * kh
        for q in range(4):
            a(f"ds_write_b128 v{T2}, {vr(AF + give + 4 * q, 4)} offset:{q * 1024}")
            a(f"ds_write_b128 v{T2}, {vr(AS + give + 4 * q, 4)} offset:{4096 + q * 1024}")
        a("s_waitcnt lgkmcnt(0)")
        a("s_barrier")
        for q in range(4):
            a(f"ds_read_b128 {vr(AF + give + 4 * q, 4)}, v{T3} offset:{q * 1024}")
        for q in range(4):
            a(f"ds_read_b128 {vr(AS + give + 4 * q, 4)}, v{T3} offset:{4096 + q * 1024}")
        a("s_waitcnt lgkmcnt(4)")
        f, s, tmp = AF + keep, AS + keep, FA
        for k in range(16):
            a(f"v_add_f32 v{f + k}, v{f + k}, v{AF + give + k}")
        for k in range(16):
            a(f"v_mul_f32 v{tmp + k}, {f32(-LOG2E)}, v{f + k}")
        for k in range(16):
            a(f"v_exp_f32 v{tmp + k}, v{tmp + k}")
        a("s_waitcnt lgkmcnt(0)")
        for k in range(16):
            a(f"v_add_f32 v{s + k}, v{s + k}, v{AS + give + k}")
        for k in range(16):
            a(f"v_add_f32 v{tmp + k}, 1.0, v{tmp + k}")
        for k in range(16):
            a(f"v_rcp_f32 v{tmp + k}, v{tmp + k}")
        for k in range(16):
            a(f"v_mul_f32 v{f + k}, v{f + k}, v{s + k}")
        a("s_waitcnt vmcnt(0)")
        xs = AS + give
        for k in range(8):
            a(f"v_lshlrev_b32 v{xs + 2 * k}, 16, v{XR + k}")
            a(f"v_and_b32 v{xs + 2 * k + 1}, 0xffff0000, v{XR + k}")
        for k in range(16):
            a(f"v_fmac_f32 v{xs + k}, v{f + k}, v{tmp + k}")
        for k in range(8):
            a(f"v_cvt_pk_bf16_f32 v{XR + k}, v{xs + 2 * k}, v{xs + 2 * k + 1}")
        a(f"buffer_store_dwordx4 {vr(XR, 4)}, v{T0}, s[20:23], s28 offen")
        a(f"buffer_store_dwordx4 {vr(XR + 4, 4)}, v{T0}, s[20:23], s28 offen offset:32")
        stamp(a, 3)
        if DIAG:
            a("s_waitcnt vmcnt(0)")
        stamp(a, 4)
        stamp_flush(a, 3, 5, 24, 6, 7, T1)
        a("s_endpgm")
    a("L_fn_end:")
    a("s_endpgm")
    return kernel_desc(name, NV)


LAUNCHES = [("ln_kernel", 256, 512, 16384), ("gemm1_kernel", 256, 512, G1_LDS),
            ("attn_kernel", 256, 512, AT_LDS), ("final_kernel", 256, 512, FN_LDS)]


def build():
    head = open("recurrent_scan__mha_block__swiglu_ffn__prompt.s.ref").read().split("\n")
    hdr = [ln for ln in head[:11]]
    out = "\n".join(hdr) + "\n"
    for n, g, b, l in LAUNCHES:
        out += f"; @launch kernel={n} grid=({g},1,1) block=({b},1,1) lds={l}\n"
    out += '.amdgcn_target "amdgcn-amd-amdhsa--gfx950"\n'
    a = Asm()
    descs = [gen_ln(a), gen_gemm1(a), gen_attn(a), gen_final(a)]
    return out + a.text() + "".join(descs)


if __name__ == "__main__":
    path = sys.argv[1] if len(sys.argv) > 1 else "recurrent_scan__mha_block__swiglu_ffn__prompt.s"
    open(path, "w").write(build())
```
